```python
import torch

def _softmax(x, axis=-1):
    return torch.softmax(x, dim=axis)
def _gelu(x):
    return torch.nn.functional.gelu(x, approximate="tanh")
def _silu(x):
    return torch.nn.functional.silu(x)
def _sigmoid(x):
    return torch.sigmoid(x)
def _layernorm(x, axis=-1, eps=1e-5):
    m = x.mean(dim=axis, keepdim=True)
    v = x.var(dim=axis, keepdim=True, unbiased=False)
    return (x - m) / torch.sqrt(v + eps)
def _scatter_add(tgt, idx, src, axis=0):
    return tgt.clone().index_add_(axis, idx, src)
def _segment_sum(src, seg, n):
    out = torch.zeros((n,) + src.shape[1:], dtype=src.dtype)
    return out.index_add_(0, seg, src)
def _pad(x, pw):
    flat = tuple(v for pair in reversed(pw) for v in pair)
    return torch.nn.functional.pad(x, flat)

kernel_name = 'concat_heads__mha_block_cached__mha_block_cached__near_ridge'

def setup_inputs():

    _w = (lambda a: (lambda t: t.to(torch.bfloat16) if t.is_floating_point() else t)(torch.as_tensor(a)))
    def _A_setup():
        B, Sq, D = 8, 96, 640
        H, Sk, Dh = 32, 512, 128
        return {
            "x": _w((lambda *s: torch.randn(*s, dtype=torch.bfloat16) * 0.8)(B, Sq, D)),
            "k_cache": _w((lambda *s: torch.randn(*s, dtype=torch.bfloat16) * 0.8)(B, H, Sk, Dh)),
            "v_cache": _w((lambda *s: torch.randn(*s, dtype=torch.bfloat16) * 0.05)(B, H, Sk, Dh)),
            "wq": _w((lambda *s: torch.randn(*s, dtype=torch.bfloat16) * 0.8)(D, H * Dh) * (D ** -0.5)),
            "wo": _w((lambda *s: torch.randn(*s, dtype=torch.bfloat16) * 0.05)(H * Dh, D) * ((H * Dh) ** -0.5)),
        }
    _A_in = _A_setup()

    def _B_setup():
        B, Sq, D = 8, 96, 640
        H, Sk, Dh = 32, 512, 128
        return {
            "x": _w((lambda *s: torch.randn(*s, dtype=torch.bfloat16) * 0.8)(B, Sq, D)),
            "k_cache": _w((lambda *s: torch.randn(*s, dtype=torch.bfloat16) * 0.8)(B, H, Sk, Dh)),
            "v_cache": _w((lambda *s: torch.randn(*s, dtype=torch.bfloat16) * 0.05)(B, H, Sk, Dh)),
            "wq": _w((lambda *s: torch.randn(*s, dtype=torch.bfloat16) * 0.8)(D, H * Dh) * (D ** -0.5)),
            "wo": _w((lambda *s: torch.randn(*s, dtype=torch.bfloat16) * 0.05)(H * Dh, D) * ((H * Dh) ** -0.5)),
        }
    _B_in = _B_setup()

    return {
        "A_x": _A_in["x"],
        "A_k_cache": _A_in["k_cache"],
        "A_v_cache": _A_in["v_cache"],
        "A_wq": _A_in["wq"],
        "A_wo": _A_in["wo"],
        "B_x": _B_in["x"],
        "B_k_cache": _B_in["k_cache"],
        "B_v_cache": _B_in["v_cache"],
        "B_wq": _B_in["wq"],
        "B_wo": _B_in["wo"],
    }

def reference(A_x, A_k_cache, A_v_cache, A_wq, A_wo, B_x, B_k_cache, B_v_cache, B_wq, B_wo):
    def _A_ref(x, k_cache, v_cache, wq, wo):
        B, Sq, D = x.shape
        H, Dh = 32, 128
        q = (lambda x, *d: x.permute(*d))((x @ wq).reshape(B, Sq, H, Dh), 0, 2, 1, 3)
        scores = torch.einsum("bhqd,bhkd->bhqk", q, k_cache) * (Dh ** -0.5)
        p = _softmax(scores, axis=-1)
        o = torch.einsum("bhqk,bhkd->bhqd", p, v_cache)
        return (lambda x, *d: x.permute(*d))(o, 0, 2, 1, 3).reshape(B, Sq, H * Dh) @ wo

    def _B_ref(x, k_cache, v_cache, wq, wo):
        B, Sq, D = x.shape
        H, Dh = 32, 128
        q = (lambda x, *d: x.permute(*d))((x @ wq).reshape(B, Sq, H, Dh), 0, 2, 1, 3)
        scores = torch.einsum("bhqd,bhkd->bhqk", q, k_cache) * (Dh ** -0.5)
        p = _softmax(scores, axis=-1)
        o = torch.einsum("bhqk,bhkd->bhqd", p, v_cache)
        return (lambda x, *d: x.permute(*d))(o, 0, 2, 1, 3).reshape(B, Sq, H * Dh) @ wo

    a = _A_ref(A_x, A_k_cache, A_v_cache, A_wq, A_wo)
    b = _B_ref(B_x, B_k_cache, B_v_cache, B_wq, B_wo)
    return torch.concatenate([a, b], axis=-1)
```

```python
import re

class Asm:
    def __init__(self):
        self.lines = []
    def __call__(self, s):
        for l in s.split("\n"):
            l = l.strip()
            if l:
                self.lines.append("    " + l)
    def label(self, l):
        self.lines.append(l + ":")
    def comment(self, c):
        self.lines.append("    ; " + c)
    def raw(self, s):
        self.lines.append(s)
    def extend(self, other):
        self.lines.extend(other.lines if isinstance(other, Asm) else other)
    def text(self):
        return "\n".join(self.lines) + "\n"

def interleave(main, fill, start=0, every=None):
    out = []
    n = len(main)
    m = len(fill)
    if n == 0:
        return list(fill)
    k = 0
    for i, ins in enumerate(main):
        out.append(ins)
        tgt = (m * (i + 1) + n - 1) // n if every is None else min(m, every * (i + 1))
        while k < tgt:
            out.append(fill[k]); k += 1
    out.extend(fill[k:])
    return out

_REG = re.compile(r'\b([vas])(\d+)\b|\b([vas])\[(\d+):(\d+)\]')
def regs_of(op):
    res = set()
    for m in _REG.finditer(op):
        if m.group(1):
            res.add((m.group(1), int(m.group(2))))
        else:
            for i in range(int(m.group(4)), int(m.group(5)) + 1):
                res.add((m.group(3), i))
    if 'vcc' in op: res.add(('s', 'vcc'))
    return res

TRANS = ('v_exp_f32', 'v_log_f32', 'v_rcp_f32', 'v_rsq_f32', 'v_sqrt_f32', 'v_sin_f32', 'v_cos_f32')

def split_ops(s):
    parts = []; cur = ''; depth = 0
    for ch in s:
        if ch == '[': depth += 1
        if ch == ']': depth -= 1
        if ch == ',' and depth == 0:
            parts.append(cur.strip()); cur = ''
        else:
            cur += ch
    if cur.strip(): parts.append(cur.strip())
    return parts

def classify(line):
    s = line.split(';')[0].strip()
    if not s or s.endswith(':') or s.startswith('.'):
        return None
    parts = s.split(None, 1)
    op = parts[0]
    ops = split_ops(parts[1]) if len(parts) > 1 else []
    d = dict(op=op, kind='other', dst=set(), src=set(), a=set(), b=set(), c=set(), text=s)
    if op.startswith('v_mfma'):
        d['kind'] = 'mfma'
        d['dst'] = regs_of(ops[0]); d['a'] = regs_of(ops[1]); d['b'] = regs_of(ops[2]); d['c'] = regs_of(ops[3].split()[0])
        d['src'] = d['a'] | d['b'] | d['c']
        d['passes'] = 8 if '32x32x16' in op else 4
    elif op.startswith('ds_read') or op.startswith('ds_bpermute') or op.startswith('ds_swizzle'):
        d['kind'] = 'lds'; d['dst'] = regs_of(ops[0])
        for o in ops[1:]: d['src'] |= regs_of(o.split()[0])
    elif op.startswith('ds_write') or op.startswith('ds_add'):
        d['kind'] = 'lds'
        for o in ops: d['src'] |= regs_of(o.split()[0])
    elif op.startswith('buffer_load') or op.startswith('global_load'):
        d['kind'] = 'vmem'
        if ' lds' in s or 'load_lds' in op:
            for o in ops: d['src'] |= regs_of(o.split()[0])
        else:
            d['dst'] = regs_of(ops[0])
            for o in ops[1:]: d['src'] |= regs_of(o.split()[0])
    elif op.startswith('buffer_store') or op.startswith('global_store') or op.startswith('global_atomic') or op.startswith('buffer_atomic'):
        d['kind'] = 'vmem'; d['store'] = True
        for o in ops: d['src'] |= regs_of(o.split()[0])
        d['wide'] = ('x4' in op or 'x3' in op)
        if op.startswith('buffer_store'): d['data'] = regs_of(ops[0])
        elif op.startswith('global_store'): d['data'] = regs_of(ops[1])
        else: d['data'] = set()
    elif op.startswith('v_cmp'):
        d['kind'] = 'valu'; d['dst'] = regs_of(ops[0]); d['wsgpr'] = True
        for o in ops[1:]: d['src'] |= regs_of(o)
    elif op.startswith('v_readfirstlane') or op.startswith('v_readlane'):
        d['kind'] = 'valu'; d['dst'] = regs_of(ops[0]); d['wsgpr'] = True; d['rl'] = True
        for o in ops[1:]: d['src'] |= regs_of(o)
    elif op.startswith('v_permlane'):
        d['kind'] = 'valu'; d['perm'] = True
        d['dst'] = regs_of(ops[0]) | regs_of(ops[1]); d['src'] = set(d['dst'])
    elif op.startswith('v_'):
        d['kind'] = 'valu'; d['dst'] = regs_of(ops[0])
        for o in ops[1:]: d['src'] |= regs_of(o)
        if op.startswith('v_fmac') or op.startswith('v_dot2c') : d['src'] |= d['dst']
        if op.startswith('v_cndmask') and len(ops) == 3: d['src'].add(('s', 'vcc'))
        if op.split('_e')[0] in TRANS or op in TRANS: d['trans'] = True
        if '_co_' in op:
            d['dst'] |= regs_of(ops[1]); d['wsgpr'] = True
    elif op == 's_nop':
        d['kind'] = 'nop'; d['n'] = int(ops[0], 0) + 1
    elif op.startswith('s_'):
        d['kind'] = 'salu'
        if op.startswith('s_cbranch') or op == 's_branch' or op == 's_endpgm' or op == 's_barrier' or op.startswith('s_waitcnt') or op.startswith('s_sleep') or op.startswith('s_setprio'):
            pass
        elif op.startswith('s_cmp'):
            for o in ops: d['src'] |= regs_of(o)
        else:
            if ops:
                d['dst'] = regs_of(ops[0])
                if ops[0].strip() == 'm0': d['wm0'] = True
                if ops[0].strip() == 'exec': d['wexec'] = True
            for o in ops[1:]: d['src'] |= regs_of(o)
    return d

def check_hazards(lines, verbose=True):
    ins = []
    for i, l in enumerate(lines):
        c = classify(l)
        if c is None:
            continue
        c['ln'] = i
        ins.append(c)
    errs = []
    W = 24
    for i, c in enumerate(ins):
        dist = 0
        for j in range(i - 1, max(-1, i - W - 1), -1):
            p = ins[j]
            need = 0; why = ''
            if p['kind'] == 'mfma':
                ps = p['passes']
                rawv = {4: 8, 8: 12}[ps]; ovl = {4: 6, 8: 10}[ps]; war = {4: 3, 8: 7}[ps]
                if c['kind'] == 'mfma':
                    if p['dst'] & (c['a'] | c['b']): need, why = rawv, 'mfma D -> mfma A/B'
                    elif p['dst'] & c['c']:
                        if not (p['dst'] == c['c'] and p['passes'] == c['passes']): need, why = ovl, 'mfma D -> mfma C overlapped'
                    if p['dst'] & c['dst'] and not (p['dst'] == c['dst']):
                        need, why = max(need, ovl), 'mfma D -> mfma D partial'
                    if p['dst'] == c['dst'] and not (c['c'] == c['dst']) :
                        need, why = max(need, rawv), 'mfma D WAW (new chain)'
                elif c['kind'] in ('valu', 'lds', 'vmem'):
                    if p['dst'] & (c['src'] | c['dst']): need, why = rawv, 'mfma D -> valu/mem'
                    elif c['kind'] == 'valu' and (p['c'] & c['dst']): need, why = war, 'mfma C WAR valu'
            elif p['kind'] == 'valu':
                if c['kind'] == 'mfma' and (p['dst'] & c['src']): need, why = 2, 'valu -> mfma'
                if c.get('perm') and (p['dst'] & c['src']): need, why = max(need, 2), 'valu -> permlane'
                if c.get('rl') and (p['dst'] & c['src']): need, why = max(need, 1), 'valu -> readlane'
                if p.get('trans') and c['kind'] == 'valu' and not c.get('trans') and (p['dst'] & c['src']): need, why = max(need, 1), 'trans -> valu'
                if p.get('trans') and c['kind'] == 'valu' and c.get('trans') and (p['dst'] & c['src']): need, why = max(need, 1), 'trans -> trans'
                if p.get('wsgpr'):
                    sd = {r for r in p['dst'] if r[0] == 's'}
                    if c['kind'] == 'valu' and (sd & c['src']): need, why = max(need, 2), 'valu sgpr -> valu'
                    if c['kind'] == 'vmem' and (sd & c['src']): need, why = max(need, 5), 'valu sgpr -> vmem'
                    if c['kind'] == 'salu' and (sd & c['src']): need, why = max(need, 1), 'valu sgpr -> salu (pad)'
                    if c['op'].startswith('s_cbranch_vcc') and ('s', 'vcc') in sd: need, why = max(need, 1), 'vcc -> branch (pad)'
            elif p['kind'] == 'vmem' and p.get('store') and p.get('wide'):
                if c['kind'] == 'valu' and (p['data'] & c['dst']): need, why = 2, 'wide store WAR valu'
                elif (p['data'] & c['dst']): need, why = 1, 'wide store WAR'
            elif p['kind'] == 'salu':
                if p.get('wm0') and c['kind'] == 'vmem' and ' lds' in c['text']: need, why = 1, 'm0 -> lds dma'
                if p.get('wexec') and c['kind'] == 'mfma': need, why = 0, ''
            if need > dist:
                errs.append(f"hazard [{why}] need {need} have {dist}:\n   P L{p['ln']}: {p['text']}\n   C L{c['ln']}: {c['text']}")
            dist += p['n'] if p['kind'] == 'nop' else 1
            if dist >= 20:
                break
    if verbose:
        for e in errs[:40]:
            print(e)
    return errs
```

```python
import sys
from asmlib import Asm, interleave, check_hazards

NAME = "concat_heads__mha_block_cached__mha_block_cached__near_ridge"
HDR = open('cdna_kernels/%s.s.ref' % NAME).read().split("; Override launch")[0]

KB = 1024
SCALE = 1.4426950408889634 / (128 ** 0.5)
import struct
def f2u(x): return struct.unpack('<I', struct.pack('<f', x))[0]
THR = 65536.0
WS_O = 0
WS_PART = 16 * 1024 * 1024
WS_DBG = 48 * 1024 * 1024

S_K, S_V, S_WQ, S_X, S_WO, S_WS, S_OUT = 4, 8, 12, 16, 20, 24, 28
sWAVE, sBR, sG, sB, sNQ = 3, 32, 33, 34, 35
sT0, sT1, sT2, sT3 = 36, 37, 38, 39
sUNIT, sCNT, sDELTA, sFIRST, sTHR, sSCALE, sROT = 72, 73, 74, 75, 76, 77, 78
sOFFA, sOFFB, sOFFC, sSLOT = 79, 80, 81, 82
sH = 83
sTM = 84
def srd(b): return f"s[{b}:{b+3}]"

def prologue(a, nwg):
    a(f"s_cmp_ge_u32 s2, {nwg}")
    a("s_cbranch_scc1 L_END_%s" % a.kname)
    a("s_load_dwordx16 s[40:55], s[0:1], 0")
    a("s_load_dwordx4 s[56:59], s[0:1], 64")
    a("s_load_dwordx4 s[60:63], s[0:1], 80")
    a("s_load_dwordx2 s[64:65], s[0:1], 96")
    a("v_lshrrev_b32 v1, 6, v0")
    a("s_and_b32 s36, s2, 7")
    a(f"v_readfirstlane_b32 s{sWAVE}, v1")
    a(f"s_lshr_b32 s{sBR}, s36, 2")
    a(f"s_and_b32 s{sG}, s36, 3")
    a("s_lshr_b32 s36, s2, 3")
    a(f"s_lshr_b32 s{sB}, s36, 2")
    a(f"s_and_b32 s{sNQ}, s36, 3")
    a("v_and_b32 v1, 63, v0")
    a("s_waitcnt lgkmcnt(0)")
    a(f"s_cmp_eq_u32 s{sBR}, 0")
    def mk(dst, ra, rb, nbytes):
        a(f"s_cselect_b32 s{dst}, s{ra}, s{rb}")
        a(f"s_cselect_b32 s{dst+1}, s{ra+1}, s{rb+1}")
        a(f"s_mov_b32 s{dst+2}, {nbytes}")
        a(f"s_mov_b32 s{dst+3}, 0x20000")
    mk(S_X, 40, 50, 8*96*640*2)
    mk(S_K, 42, 52, 8*32*512*128*2)
    mk(S_V, 44, 54, 8*32*512*128*2)
    mk(S_WQ, 46, 56, 640*4096*2)
    mk(S_WO, 48, 58, 4096*640*2)
    for dst, r, nb in ((S_OUT, 60, 8*96*1280*2), (S_WS, 64, 268435456)):
        a(f"s_mov_b32 s{dst}, s{r}")
        a(f"s_mov_b32 s{dst+1}, s{r+1}")
        a(f"s_mov_b32 s{dst+2}, {nb}")
        a(f"s_mov_b32 s{dst+3}, 0x20000")
    for base in (S_X, S_K, S_V, S_WQ, S_WO, S_OUT, S_WS):
        a(f"s_and_b32 s{base+1}, s{base+1}, 0xffff")

vAK, vAV, vAW, vAX = 16, 24, 28, 32
vL, vPS, vPSB = 36, 37, 38
QACC = 48
S0, S1, NEG, P0, P1 = 48, 64, 80, 96, 104
FR1 = 112
OACC = 176
TMP = 240
aX, aQF, aFR0 = 0, 160, 192

def vr(b, n): return f"v[{b}:{b+n-1}]"
def ar(b, n): return f"a[{b}:{b+n-1}]"

class LdsQ:
    def __init__(self): self.q = []
    def issue(self, tag): self.q.append(tag)
    def wait(self, tags):
        idx = [i for i, t in enumerate(self.q) if t in tags]
        if not idx: return None
        last = max(idx)
        n = len(self.q) - 1 - last
        self.q = self.q[last+1:]
        return f"s_waitcnt lgkmcnt({min(n,15)})"

def lane_setup_compute(a):
    a("v_lshrrev_b32 v2, 5, v1")
    a("v_and_b32 v3, 31, v1")
    a("v_and_b32 v4, 15, v1")
    a("v_xor_b32 v4, v4, v2")
    a("v_lshlrev_b32 v5, 8, v3")
    for s in range(8):
        a(f"v_xor_b32 v6, {2*s}, v4")
        a(f"v_lshl_add_u32 v{vAK+s}, v6, 4, v5")
    a("v_lshrrev_b32 v6, 2, v1")
    a("v_and_b32 v6, 3, v6")
    a("v_and_b32 v7, 3, v1")
    a("v_and_b32 v8, 1, v7")
    a("v_lshlrev_b32 v8, 1, v8")
    a("v_lshrrev_b32 v9, 1, v7")
    a("v_or_b32 v8, v8, v9")
    a("v_lshlrev_b32 v8, 3, v8")
    a("v_lshrrev_b32 v9, 4, v1")
    a("v_and_b32 v9, 1, v9")
    a("v_lshl_add_u32 v8, v9, 5, v8")
    a("v_lshl_add_u32 v10, v2, 2, v6")
    a("v_lshlrev_b32 v10, 8, v10")
    a("v_add_u32 v10, v10, v8")
    a("v_lshl_add_u32 v11, v2, 3, v6")
    a("v_lshlrev_b32 v11, 8, v11")
    a("v_add_u32 v11, v11, v8")
    for t in range(4):
        a(f"v_xor_b32 v12, {t}, v6")
        a(f"v_lshlrev_b32 v12, 6, v12")
        a(f"v_add_u32 v{vAV+t}, v10, v12")
        a(f"v_add_u32 v{vAW+t}, v11, v12")
        a(f"v_add_u32 v{vAV+t}, {16*KB}, v{vAV+t}")
    a(f"s_lshl_b32 s{sT0}, s{sWAVE}, 5")
    a(f"v_add_u32 v12, s{sT0}, v3")
    a("v_lshrrev_b32 v13, 1, v12")
    a("v_and_b32 v13, 7, v13")
    a("v_xor_b32 v13, v13, v2")
    a("v_lshlrev_b32 v14, 7, v12")
    for s in range(4):
        a(f"v_xor_b32 v15, {2*s}, v13")
        a(f"v_lshl_add_u32 v{vAX+s}, v15, 4, v14")
        a(f"v_add_u32 v{vAX+s}, {16*KB}, v{vAX+s}")

Q1_BASE = lambda q: 64*KB + (q % 3) * 32*KB
Q2_BASE = lambda q: 96*KB + (q % 4) * 16*KB

def frag_q(setid, s, t):
    idx = (s * 4 + t) * 4
    return ('a', aFR0 + idx) if setid == 0 else ('v', FR1 + idx)
def rr(f, off, n): return f"{f[0]}[{f[1]+off}:{f[1]+off+n-1}]"

def q_phase(a):
    for q in range(11):
        a("s_barrier")
        reads = []
        if q <= 9:
            p1 = Q1_BASE(q-1) if q > 0 else 0
            p2 = Q2_BASE(q-1) if q > 0 else 0
            a(f"s_cmp_eq_u32 s{sUNIT}, 0")
            a(f"s_mov_b32 s{sT0}, {(Q1_BASE(q)-p1) & 0xffffffff}")
            a(f"s_cselect_b32 s{sDELTA}, s{sT0}, {(Q2_BASE(q)-p2) & 0xffffffff}")
            for t in range(4):
                a(f"v_add_u32 v{vAW+t}, s{sDELTA}, v{vAW+t}")
            a(f"s_cbranch_scc0 L_qx_skip{q}")
            for s in range(4):
                a(f"v_add_u32 v{vAX+s}, s{sDELTA}, v{vAX+s}")
            for s in range(4):
                a(f"ds_read_b128 {ar(aX + (q*4+s)*4, 4)}, v{vAX+s}")
            a.label(f"L_qx_skip{q}")
            for s in range(4):
                for t in range(4):
                    f = frag_q(q & 1, s, t)
                    for jj in range(2):
                        reads.append(f"ds_read_b64_tr_b16 {rr(f, 2*jj, 2)}, v{vAW+t} offset:{(16*s+4*jj)*256}")
        mf = []
        if q >= 1:
            p = q - 1
            for s in range(4):
                for t in range(4):
                    f = frag_q(p & 1, s, t)
                    c = "0" if (p == 0 and s == 0) else vr(QACC+16*t, 16)
                    mf.append(f"v_mfma_f32_32x32x16_bf16 {vr(QACC+16*t,16)}, {rr(f,0,4)}, {ar(aX+(p*4+s)*4,4)}, {c}")
        fill = list(reads)
        if q == 10:
            fill += [f"v_mov_b32 v{OACC+i}, 0" for i in range(64)]
        for ins in interleave(mf, fill) if mf else fill:
            a(ins)
        a("s_waitcnt lgkmcnt(0)")
    a(f"s_cmp_eq_u32 s{sUNIT}, 0")
    a(f"s_mov_b32 s{sT0}, {(-Q1_BASE(9)) & 0xffffffff}")
    a(f"s_cselect_b32 s{sDELTA}, s{sT0}, {(-Q2_BASE(9)) & 0xffffffff}")
    for t in range(4):
        a(f"v_add_u32 v{vAW+t}, s{sDELTA}, v{vAW+t}")
    a("s_nop 7")
    a("s_nop 3")
    for t in range(4):
        for r in range(0, 16, 2):
            src = QACC + 16*t + r
            tmp = TMP + (r % 8)
            a(f"v_mul_f32 v{tmp}, s{sSCALE}, v{src}")
            a(f"v_mul_f32 v{tmp+1}, s{sSCALE}, v{src+1}")
            a(f"v_cvt_pk_bf16_f32 v{tmp}, v{tmp}, v{tmp+1}")
            a(f"v_accvgpr_write_b32 a{aQF + (2*t + r//8)*4 + (r%8)//2}, v{tmp}")
    for i in range(16):
        a(f"v_mov_b32 v{NEG+i}, 0")
    a(f"v_mov_b32 v{vL}, 0")
    a(f"s_mov_b32 s{sFIRST}, 1")

def sm_list(S, P):
    L = []
    for r in range(0, 16, 4):
        for e in range(4):
            L.append(f"v_exp_f32 v{TMP+r+e}, v{S+r+e}")
        if r == 0:
            L.append(f"v_add_f32 v{vPS}, v{TMP}, v{TMP+1}")
            L.append(f"v_add_f32 v{vPSB}, v{TMP+2}, v{TMP+3}")
        else:
            L.append(f"v_add_f32 v{vPS}, v{vPS}, v{TMP+r}")
            L.append(f"v_add_f32 v{vPSB}, v{vPSB}, v{TMP+r+2}")
            L.append(f"v_add_f32 v{vPS}, v{vPS}, v{TMP+r+1}")
            L.append(f"v_add_f32 v{vPSB}, v{vPSB}, v{TMP+r+3}")
        L.append(f"v_cvt_pk_bf16_f32 v{P+r//2}, v{TMP+r}, v{TMP+r+1}")
        L.append(f"v_cvt_pk_bf16_f32 v{P+r//2+1}, v{TMP+r+2}, v{TMP+r+3}")
    L.append(f"v_add_f32 v{vPS}, v{vPS}, v{vPSB}")
    return L

def qk_mfma(T, s):
    S = S0 if T == 0 else S1
    c = vr(NEG, 16) if s == 0 else vr(S, 16)
    return f"v_mfma_f32_32x32x16_bf16 {vr(S,16)}, {ar(aFR0 + (T*8+s)*4, 4)}, {ar(aQF+4*s,4)}, {c}"
def pv_mfma(T, m, t):
    P = P0 if T == 0 else P1
    return f"v_mfma_f32_32x32x16_bf16 {vr(OACC+16*t,16)}, {vr(FR1 + ((T*2+m)*4+t)*4, 4)}, {vr(P+4*m,4)}, {vr(OACC+16*t,16)}"
def k_read(T, s):
    return f"ds_read_b128 {ar(aFR0+(T*8+s)*4,4)}, v{vAK+s} offset:{T*8192}"
def v_read(T, m, t, jj):
    return f"ds_read_b64_tr_b16 {vr(FR1+((T*2+m)*4+t)*4+2*jj,2)}, v{vAV+t} offset:{(32*T+16*m+8*jj)*256}"

def slow_path(a, T):
    S = S0 if T == 0 else S1
    So = S1 if T == 0 else S0
    P = P0 if T == 0 else P1
    a.label(f"L_slow{T}")
    a("s_nop 15")
    a("s_nop 7")
    a(f"v_max3_f32 v2, v{S}, v{S+1}, v{S+2}")
    for r in range(3, 15, 2):
        a(f"v_max3_f32 v2, v2, v{S+r}, v{S+r+1}")
    a(f"v_max_f32 v2, v2, v{S+15}")
    a("v_mov_b32 v3, v2")
    a("s_nop 1")
    a("v_permlane32_swap_b32 v2, v3")
    a("v_max_f32 v2, v2, v3")
    a(f"s_cmp_eq_u32 s{sFIRST}, 1")
    a(f"s_cbranch_scc1 L_slow{T}_first")
    a("v_max_f32 v2, 0, v2")
    a("v_sub_f32 v3, 0, v2")
    a("v_exp_f32 v3, v3")
    a("s_nop 0")
    a(f"v_mul_f32 v{vL}, v{vL}, v3")
    for i in range(64):
        a(f"v_mul_f32 v{OACC+i}, v{OACC+i}, v3")
    a.label(f"L_slow{T}_first")
    a(f"s_mov_b32 s{sFIRST}, 0")
    for i in range(16):
        a(f"v_sub_f32 v{NEG+i}, v{NEG+i}, v2")
    for i in range(16):
        a(f"v_sub_f32 v{S+i}, v{S+i}, v2")
    for i in range(16):
        a(f"v_sub_f32 v{So+i}, v{So+i}, v2")
    for ins in sm_list(S, P):
        if ins.startswith("v_add_f32") or ins.startswith("v_cvt"):
            pass
        a(ins)
        if ins.startswith("v_exp"): pass
    a("s_nop 1")
    a(f"s_branch L_cont{T}")

def fix_trans(L):
    return L

def attn_phase(a):
    a(f"s_mov_b32 s{sCNT}, 0")
    a.label("L_attn_loop")
    a("s_barrier")
    for s in range(8):
        a(f"v_add_u32 v{vAK+s}, s{sDELTA}, v{vAK+s}")
    for t in range(4):
        a(f"v_add_u32 v{vAV+t}, s{sDELTA}, v{vAV+t}")
    Q = LdsQ()
    for s in range(8):
        a(k_read(0, s)); Q.issue(('K', 0, s))
    for s in range(4):
        a(k_read(1, s)); Q.issue(('K', 1, s))
    a(f"s_cmp_eq_u32 s{sCNT}, 0")
    a("s_cbranch_scc1 L_skip_pv1")
    for m in range(2):
        for t in range(4):
            a(pv_mfma(1, m, t))
    a.label("L_skip_pv1")
    fill = [(k_read(1, s), ('K', 1, s)) for s in range(4, 8)]
    fill += [(v_read(0, m, t, jj), ('V', 0, m, t)) for m in range(2) for t in range(4) for jj in range(2)]
    k = 0
    for s in range(8):
        w = Q.wait({('K', 0, s)})
        if w: a(w)
        a(qk_mfma(0, s))
        n = 2 if s < 7 else 2
        for _ in range(n):
            if k < len(fill) and len(Q.q) < 14:
                a(fill[k][0]); Q.issue(fill[k][1]); k += 1
    sm0 = sm_list(S0, P0)
    seq = []
    smi = 0
    for s in range(8):
        w = Q.wait({('K', 1, s)})
        if w: a(w)
        a(qk_mfma(1, s))
        if s < 2:
            for _ in range(4):
                if k < len(fill):
                    a(fill[k][0]); Q.issue(fill[k][1]); k += 1
            if s == 1:
                a("s_nop 2")
        else:
            n = 7
            for _ in range(n):
                if smi < len(sm0):
                    a(sm0[smi]); smi += 1
    while k < len(fill):
        a(fill[k][0]); Q.issue(fill[k][1]); k += 1
    while smi < len(sm0):
        a(sm0[smi]); smi += 1
    a(f"v_cmp_nge_f32 vcc, s{sTHR}, v{vPS}")
    a(f"s_cmp_eq_u32 s{sFIRST}, 1")
    a("s_cbranch_scc1 L_slow0")
    a("s_cbranch_vccnz L_slow0")
    a.label("L_cont0")
    a(f"v_add_f32 v{vL}, v{vL}, v{vPS}")
    sm1 = sm_list(S1, P1)
    fill = [(v_read(1, m, t, jj), ('V', 1, m, t)) for m in range(2) for t in range(4) for jj in range(2)]
    k = 0; smi = 0
    i = 0
    for m in range(2):
        for t in range(4):
            w = Q.wait({('V', 0, m, t)})
            if w: a(w)
            a(pv_mfma(0, m, t))
            for _ in range(2):
                a(fill[k][0]); Q.issue(fill[k][1]); k += 1
            for _ in range(5):
                if smi < len(sm1):
                    a(sm1[smi]); smi += 1
            i += 1
    while smi < len(sm1):
        a(sm1[smi]); smi += 1
    a(f"v_cmp_nge_f32 vcc, s{sTHR}, v{vPS}")
    a("s_nop 0")
    a("s_cbranch_vccnz L_slow1")
    a.label("L_cont1")
    a(f"v_add_f32 v{vL}, v{vL}, v{vPS}")
    a(f"s_add_u32 s{sSLOT}, s{sSLOT}, 1")
    a(f"s_cmp_eq_u32 s{sSLOT}, 3")
    a(f"s_cselect_b32 s{sSLOT}, 0, s{sSLOT}")
    a(f"s_mov_b32 s{sT0}, {(-64*KB) & 0xffffffff}")
    a(f"s_cselect_b32 s{sDELTA}, s{sT0}, {32*KB}")
    a(f"s_add_u32 s{sCNT}, s{sCNT}, 1")
    a(f"s_cmp_lt_u32 s{sCNT}, 8")
    a("s_waitcnt lgkmcnt(0)")
    a("s_cbranch_scc1 L_attn_loop")
    for m in range(2):
        for t in range(4):
            a(pv_mfma(1, m, t))

def attn_epilogue(a):
    a(f"v_mov_b32 v2, v{vL}")
    a(f"v_mov_b32 v3, v{vL}")
    a("s_nop 1")
    a("v_permlane32_swap_b32 v2, v3")
    a("v_add_f32 v2, v2, v3")
    a("v_rcp_f32 v2, v2")
    a(f"s_lshl_b32 s{sT0}, s{sBR}, 3")
    a(f"s_add_u32 s{sT0}, s{sT0}, s{sB}")
    a(f"s_lshl_b32 s{sT0}, s{sT0}, 5")
    a(f"s_add_u32 s{sT0}, s{sT0}, s{sH}")
    a(f"s_mul_i32 s{sT0}, s{sT0}, 3")
    a(f"s_add_u32 s{sT0}, s{sT0}, s{sWAVE}")
    a(f"s_lshl_b32 s{sT0}, s{sT0}, 13")
    a(f"s_add_u32 s{sT0}, s{sT0}, {WS_O}")
    a("v_lshlrev_b32 v4, 4, v1")
    a("s_nop 7")
    for t in range(4):
        for hf in range(2):
            base = OACC + 16*t + 8*hf
            d = TMP + 4*((t*2+hf) % 4)
            for e in range(0, 8, 2):
                a(f"v_mul_f32 v{base+e}, v{base+e}, v2")
                a(f"v_mul_f32 v{base+e+1}, v{base+e+1}, v2")
            for e in range(0, 8, 2):
                a(f"v_cvt_pk_bf16_f32 v{d+e//2}, v{base+e}, v{base+e+1}")
            s = 2*t + hf
            a(f"buffer_store_dwordx4 {vr(d,4)}, v4, {srd(S_WS)}, s{sT0} offen offset:{(s%4)*1024}")
            if s % 4 == 3:
                a(f"s_add_u32 s{sT0}, s{sT0}, 4096")

class VmQ:
    def __init__(self): self.n = 0; self.mark = {}
    def issued(self, tag, cnt):
        self.n += cnt; self.mark[tag] = self.n
    def wait(self, tag):
        later = self.n - self.mark[tag]
        return f"s_waitcnt vmcnt({min(later, 63)})"

vKo, vVo, vWo_, vXo = 16, 20, 24, 28
def loader_setup(a):
    a("v_lshrrev_b32 v2, 4, v1")
    a("v_and_b32 v3, 15, v1")
    for e in range(4):
        a(f"v_add_u32 v4, {4*e}, v2")
        a("v_xor_b32 v4, v4, v3")
        a("v_lshlrev_b32 v4, 4, v4")
        a(f"v_lshl_add_u32 v{vKo+e}, v2, 8, v4")
    a("v_lshlrev_b32 v4, 2, v2")
    a("v_xor_b32 v4, v4, v3")
    a("v_lshlrev_b32 v4, 4, v4")
    a(f"v_lshl_add_u32 v{vVo}, v2, 8, v4")
    a("v_lshlrev_b32 v5, 13, v2")
    a("v_add_u32 v5, v5, v4")
    for e in range(4):
        a(f"v_add_u32 v{vWo_+e}, {e*(32768-1024)}, v5")
    a("v_lshrrev_b32 v6, 3, v1")
    a("v_and_b32 v7, 7, v1")
    a(f"s_movk_i32 s{sT0}, 1280")
    a(f"v_mul_lo_u32 v6, v6, s{sT0}")
    for e in range(4):
        a(f"v_add_u32 v8, {4*(e&1)}, v2")
        a("v_xor_b32 v8, v8, v7")
        a("v_lshl_add_u32 v8, v8, 4, v6")
        a(f"v_add_u32 v{vXo+e}, {e*(10240-1024)}, v8")

def ld_kv(a, slot_expr_const=None, nt=True):
    pol = " nt" if nt else ""
    for m in range(4):
        a(f"s_add_u32 m0, s{sOFFB}, {m*4096}")
        a(f"s_add_u32 s{sT0}, s{sOFFA}, {m*4096}")
        for e in range(4):
            a(f"buffer_load_dwordx4 v{vKo+e}, {srd(S_K)}, s{sT0} offen offset:{e*1024}{pol} lds")
    for m in range(4):
        a(f"s_add_u32 m0, s{sOFFB}, {16*KB + m*4096}")
        a(f"s_add_u32 s{sT0}, s{sOFFA}, {m*4096}")
        for e in range(4):
            a(f"buffer_load_dwordx4 v{vVo}, {srd(S_V)}, s{sT0} offen offset:{e*1024}{pol} lds")

def ld_wq(a, ldsbase):
    for m in range(4):
        a(f"s_mov_b32 m0, {ldsbase + m*4096}")
        a(f"s_add_u32 s{sT0}, s{sOFFC}, {m*131072}")
        for e in range(4):
            a(f"buffer_load_dwordx4 v{vWo_+e}, {srd(S_WQ)}, s{sT0} offen offset:{e*1024} lds")
def ld_x(a, ldsbase, sx):
    for m in range(3):
        a(f"s_mov_b32 m0, {ldsbase + m*4096}")
        a(f"s_add_u32 s{sT0}, s{sx}, {m*40960}")
        for e in range(4):
            a(f"buffer_load_dwordx4 v{vXo+e}, {srd(S_X)}, s{sT0} offen offset:{e*1024} lds")

def loader_k1(a, P):
    V = VmQ()
    sCH, sXB, sU0, sU1, sHW = 66, 67, 68, 69, 70
    a(f"s_lshl_b32 s{sT1}, s{sG}, 3")
    a(f"s_add_u32 s{sT1}, s{sT1}, s{sNQ}")
    a(f"s_lshl_b32 s{sT2}, s{sB}, 5")
    a(f"s_add_u32 s{sU0}, s{sT2}, s{sT1}")
    a(f"s_lshl_b32 s{sU0}, s{sU0}, 17")
    a(f"s_add_u32 s{sU1}, s{sU0}, {4 << 17}")
    a(f"s_mul_i32 s{sXB}, s{sB}, {96*1280}")
    a(f"s_mul_i32 s{sT2}, s{sNQ}, 5")
    a(f"s_lshr_b32 s{sT2}, s{sT2}, 1")
    a(f"s_add_u32 s{sROT}, s{sT2}, s{sB}")
    a(f"s_cmp_ge_u32 s{sROT}, 10")
    a(f"s_cselect_b32 s{sT2}, 10, 0")
    a(f"s_sub_u32 s{sROT}, s{sROT}, s{sT2}")
    if not P.get('rot', True):
        a(f"s_mov_b32 s{sROT}, 0")
    def set_chunk(q, unit):
        a(f"s_add_u32 s{sCH}, s{sROT}, {q}")
        a(f"s_cmp_ge_u32 s{sCH}, 10")
        a(f"s_cselect_b32 s{sT2}, 10, 0")
        a(f"s_sub_u32 s{sCH}, s{sCH}, s{sT2}")
        a(f"s_lshl_b32 s{sOFFC}, s{sCH}, 19")
        a(f"s_lshl_b32 s{sT2}, s{sT1}, 8")
        a(f"s_add_u32 s{sOFFC}, s{sOFFC}, s{sT2}")
        if unit == 1:
            a(f"s_add_u32 s{sOFFC}, s{sOFFC}, {4*256}")
    def tile_q1(q):
        set_chunk(q, 0)
        ld_wq(a, Q1_BASE(q))
        a(f"s_lshl_b32 s{sT3}, s{sCH}, 7")
        a(f"s_add_u32 s{sT3}, s{sT3}, s{sXB}")
        ld_x(a, Q1_BASE(q) + 16*KB, sT3)
        V.issued(('Q1', q), 28)
    def tile_q2(q):
        set_chunk(q, 1)
        ld_wq(a, Q2_BASE(q))
        V.issued(('Q2', q), 16)
    def kv(n):
        u = sU0 if n < 8 else sU1
        a(f"s_add_u32 s{sOFFA}, s{u}, {(n%8)*16384}")
        a(f"s_mov_b32 s{sOFFB}, {(n%3)*32*KB}")
        ld_kv(a, nt=P.get('nt', True))
        V.issued(('KV', n), 32)
    tile_q1(0); tile_q1(1); tile_q1(2); kv(0)
    for q in range(11):
        if q <= 9: a(V.wait(('Q1', q)))
        a("s_barrier")
        if q >= 1 and q + 2 <= 9: tile_q1(q + 2)
        if q == 3: kv(1)
        if q == 10: kv(2)
    for n in range(8):
        a(V.wait(('KV', n)))
        a("s_barrier")
        if n >= 1: kv(n + 2)
        if n == 5:
            tile_q2(0); tile_q2(1)
        if n == 6:
            tile_q2(2); tile_q2(3)
    for q in range(11):
        if q <= 9: a(V.wait(('Q2', q)))
        a("s_barrier")
        if q == 0: kv(10)
        if q >= 1 and q + 3 <= 9: tile_q2(q + 3)
    for n in range(8, 16):
        a(V.wait(('KV', n)))
        a("s_barrier")
        if n >= 9 and n + 2 <= 15: kv(n + 2)

def kernel_begin(a, kname):
    a.kname = kname
    a.raw(".text")
    a.raw(f".globl {kname}")
    a.raw(".p2align 8")
    a.raw(f".type {kname},@function")
    a.raw(f"{kname}:")
def kernel_end(a, kname, vgpr, accum, sgpr=102):
    a.label(f"L_END_{kname}")
    a("s_endpgm")
    a.desc = getattr(a, 'desc', [])
    a.desc.append(f""".p2align 6
.amdhsa_kernel {kname}
  .amdhsa_next_free_vgpr {vgpr}
  .amdhsa_next_free_sgpr {sgpr}
  .amdhsa_accum_offset {accum}
  .amdhsa_group_segment_fixed_size 0
  .amdhsa_kernarg_size 104
  .amdhsa_user_sgpr_count 2
  .amdhsa_user_sgpr_kernarg_segment_ptr 1
  .amdhsa_system_sgpr_workgroup_id_x 1
.end_amdhsa_kernel""")

def gen_k1(a, P):
    kn = "k1_kernel"
    kernel_begin(a, kn)
    prologue(a, 256)
    a(f"s_cmp_eq_u32 s{sWAVE}, 3")
    a("s_cbranch_scc1 L_loader")
    lane_setup_compute(a)
    a(f"s_mov_b32 s{sTHR}, {f2u(THR):#x}")
    a(f"s_mov_b32 s{sSCALE}, {f2u(SCALE):#x}")
    a(f"s_mov_b32 s{sUNIT}, 0")
    a(f"s_lshl_b32 s{sH}, s{sG}, 3")
    a(f"s_add_u32 s{sH}, s{sH}, s{sNQ}")
    a(f"s_mov_b32 s{sSLOT}, 0")
    a.label("L_unit")
    q_phase(a)
    a(f"s_cmp_eq_u32 s{sUNIT}, 0")
    a(f"s_cselect_b32 s{sDELTA}, 0, {32*KB}")
    attn_phase(a)
    a("s_nop 7")
    a("s_nop 3")
    attn_epilogue(a)
    a(f"s_add_u32 s{sH}, s{sH}, 4")
    a(f"s_add_u32 s{sUNIT}, s{sUNIT}, 1")
    a(f"s_cmp_lt_u32 s{sUNIT}, 2")
    a("s_cbranch_scc1 L_unit")
    a("s_endpgm")
    slow_path(a, 0)
    slow_path(a, 1)
    a.label("L_loader")
    loader_setup(a)
    loader_k1(a, P)
    kernel_end(a, kn, 512, 256)

K2_SLOT = 32*KB
K2_NSLOT = 5
vAO, vAB = 16, 17
ACC2 = 48
FA0, FA1 = 128, 192
def gen_k2(a, P):
    kn = "k2_kernel"
    kernel_begin(a, kn)
    prologue(a, 256)
    a(f"s_cmp_eq_u32 s{sWAVE}, 3")
    a("s_cbranch_scc1 L2_loader")
    a("v_lshrrev_b32 v2, 5, v1")
    a("v_lshrrev_b32 v6, 2, v1")
    a("v_and_b32 v6, 3, v6")
    a("v_and_b32 v7, 3, v1")
    a("v_and_b32 v8, 1, v7")
    a("v_lshlrev_b32 v8, 1, v8")
    a("v_lshrrev_b32 v9, 1, v7")
    a("v_or_b32 v8, v8, v9")
    a("v_lshlrev_b32 v8, 3, v8")
    a("v_lshrrev_b32 v9, 4, v1")
    a("v_and_b32 v9, 1, v9")
    a("v_lshl_add_u32 v8, v9, 5, v8")
    a("v_lshl_add_u32 v11, v2, 3, v6")
    a(f"s_movk_i32 s{sT0}, 320")
    a(f"v_mul_lo_u32 v11, v11, s{sT0}")
    a(f"v_add_u32 v{vAO}, v11, v8")
    a(f"s_lshl_b32 s{sT0}, s{sWAVE}, 12")
    a(f"s_add_u32 s{sT0}, s{sT0}, {20*KB}")
    a(f"v_lshlrev_b32 v{vAB}, 4, v1")
    a(f"v_add_u32 v{vAB}, s{sT0}, v{vAB}")
    for i in range(80):
        a(f"v_mov_b32 v{ACC2+i}, 0")
    a(f"s_mov_b32 s{sCNT}, 0")
    a(f"s_mov_b32 s{sSLOT}, 0")
    a(f"s_mov_b32 s{sDELTA}, 0")
    def fa(st, s, t): return (0 if st == 0 else 128) + (s*5+t)*4
    def fb(st, s): return (80 if st == 0 else 208) + s*4
    def reads(st):
        L = []
        for s in range(4):
            L.append(f"ds_read_b128 {ar(fb(st,s),4)}, v{vAB} offset:{s*1024}")
            for t in range(5):
                for jj in range(2):
                    L.append(f"ds_read_b64_tr_b16 {ar(fa(st,s,t)+2*jj,2)}, v{vAO} offset:{(16*s+4*jj)*320+64*t}")
        return L
    def mf(st):
        return [f"v_mfma_f32_32x32x16_bf16 {vr(ACC2+16*t,16)}, {ar(fa(st,s,t),4)}, {ar(fb(st,s),4)}, {vr(ACC2+16*t,16)}" for s in range(4) for t in range(5)]
    def adv():
        a(f"v_add_u32 v{vAO}, s{sDELTA}, v{vAO}")
        a(f"v_add_u32 v{vAB}, s{sDELTA}, v{vAB}")
        a(f"s_add_u32 s{sSLOT}, s{sSLOT}, 1")
        a(f"s_cmp_eq_u32 s{sSLOT}, {K2_NSLOT}")
        a(f"s_cselect_b32 s{sSLOT}, 0, s{sSLOT}")
        a(f"s_mov_b32 s{sT0}, {(-(K2_NSLOT-1)*K2_SLOT) & 0xffffffff}")
        a(f"s_cselect_b32 s{sDELTA}, s{sT0}, {K2_SLOT}")
    a("s_barrier")
    adv()
    for ins in reads(0): a(ins)
    a("s_waitcnt lgkmcnt(0)")
    a(f"s_mov_b32 s{sCNT}, 0")
    a.label("L2_loop")
    a("s_barrier")
    adv()
    for ins in interleave(mf(0), reads(1)): a(ins)
    a("s_waitcnt lgkmcnt(0)")
    a(f"s_cmp_eq_u32 s{sCNT}, 7")
    a("s_cbranch_scc1 L2_last")
    a("s_barrier")
    adv()
    for ins in interleave(mf(1), reads(0)): a(ins)
    a("s_waitcnt lgkmcnt(0)")
    a(f"s_add_u32 s{sCNT}, s{sCNT}, 1")
    a("s_branch L2_loop")
    a.label("L2_last")
    for ins in mf(1): a(ins)
    a("s_nop 7")
    a("s_nop 7")
    a(f"s_lshl_b32 s{sT0}, s{sBR}, 3")
    a(f"s_add_u32 s{sT0}, s{sT0}, s{sB}")
    a(f"s_lshl_b32 s{sT0}, s{sT0}, 2")
    a(f"s_add_u32 s{sT0}, s{sT0}, s{sNQ}")
    a(f"s_lshl_b32 s{sT0}, s{sT0}, 2")
    a(f"s_add_u32 s{sT0}, s{sT0}, s{sG}")
    a(f"s_mul_i32 s{sT0}, s{sT0}, 3")
    a(f"s_add_u32 s{sT0}, s{sT0}, s{sWAVE}")
    a(f"s_mul_i32 s{sT0}, s{sT0}, {20*1024}")
    a(f"s_add_u32 s{sT0}, s{sT0}, {WS_PART}")
    a("v_lshlrev_b32 v4, 4, v1")
    for R in range(20):
        a(f"buffer_store_dwordx4 {vr(ACC2+4*R,4)}, v4, {srd(S_WS)}, s{sT0} offen offset:{(R%4)*1024}")
        if R % 4 == 3: a(f"s_add_u32 s{sT0}, s{sT0}, 4096")
    a("s_endpgm")
    a.label("L2_loader")
    vW, vLin = 16, 24
    a(f"s_movk_i32 s{sT0}, 3277")
    for e in range(5):
        a(f"v_add_u32 v2, {64*e}, v1")
        a(f"v_mul_lo_u32 v3, v2, s{sT0}")
        a("v_lshrrev_b32 v3, 16, v3")
        a("v_mul_u32_u24 v4, 20, v3")
        a("v_sub_u32 v4, v2, v4")
        a("v_mul_u32_u24 v3, 1280, v3")
        a("v_lshl_add_u32 v3, v4, 4, v3")
        if e < 4:
            a(f"v_subrev_u32 v{vW+e}, {e*1024}, v3")
        else:
            a(f"v_mov_b32 v{vW+e}, v3")
    a(f"v_lshlrev_b32 v{vLin}, 4, v1")
    for L in range(320):
        assert (L*3277) >> 16 == L // 20
    V = VmQ()
    sWOB, sOB = 66, 67
    a(f"s_mul_i32 s{sWOB}, s{sG}, {8*128*1280}")
    a(f"s_mul_i32 s{sT1}, s{sNQ}, 320")
    a(f"s_add_u32 s{sWOB}, s{sWOB}, s{sT1}")
    a(f"s_lshl_b32 s{sOB}, s{sBR}, 3")
    a(f"s_add_u32 s{sOB}, s{sOB}, s{sB}")
    a(f"s_lshl_b32 s{sOB}, s{sOB}, 5")
    a(f"s_lshl_b32 s{sT1}, s{sG}, 3")
    a(f"s_add_u32 s{sOB}, s{sOB}, s{sT1}")
    a(f"s_mul_i32 s{sOB}, s{sOB}, {3*8*1024}")
    a(f"s_add_u32 s{sOB}, s{sOB}, {WS_O}")
    a(f"s_lshl_b32 s{sROT}, s{sB}, 1")
    def tile(i):
        base = (i % K2_NSLOT) * K2_SLOT
        a(f"s_add_u32 s{sT1}, s{sROT}, {i}")
        a(f"s_and_b32 s{sT1}, s{sT1}, 15")
        a(f"s_mul_i32 s{sT2}, s{sT1}, {64*1280}")
        a(f"s_add_u32 s{sT2}, s{sT2}, s{sWOB}")
        for m in range(4):
            a(f"s_mov_b32 m0, {base + m*5*1024}")
            a(f"s_add_u32 s{sT0}, s{sT2}, {m*16*1280}")
            for e in range(4):
                a(f"buffer_load_dwordx4 v{vW+e}, {srd(S_WO)}, s{sT0} offen offset:{e*1024} lds")
            a(f"s_mov_b32 m0, {base + m*5*1024 + 4096}")
            a("s_nop 0")
            a(f"buffer_load_dwordx4 v{vW+4}, {srd(S_WO)}, s{sT0} offen lds")
        a(f"s_lshr_b32 s{sT2}, s{sT1}, 1")
        a(f"s_mul_i32 s{sT2}, s{sT2}, {3*8*1024}")
        a(f"s_and_b32 s{sT3}, s{sT1}, 1")
        a(f"s_lshl_b32 s{sT3}, s{sT3}, 12")
        a(f"s_add_u32 s{sT2}, s{sT2}, s{sT3}")
        a(f"s_add_u32 s{sT2}, s{sT2}, s{sOB}")
        for j in range(3):
            a(f"s_mov_b32 m0, {base + 20*KB + j*4096}")
            a(f"s_add_u32 s{sT0}, s{sT2}, {j*8192}")
            for e in range(4):
                a(f"buffer_load_dwordx4 v{vLin}, {srd(S_WS)}, s{sT0} offen offset:{e*1024} lds")
        V.issued(i, 32)
    for i in range(K2_NSLOT): tile(i)
    for i in range(16):
        a(V.wait(i))
        a("s_barrier")
        if i >= 1 and i - 1 + K2_NSLOT < 16: tile(i - 1 + K2_NSLOT)
    kernel_end(a, kn, 512, 256)

def gen_k3(a, P):
    kn = "k3_kernel"
    kernel_begin(a, kn)
    prologue(a, 256)
    a(f"s_lshl_b32 s{sT0}, s{sBR}, 3")
    a(f"s_add_u32 s{sT0}, s{sT0}, s{sB}")
    a(f"s_lshl_b32 s{sT0}, s{sT0}, 2")
    a(f"s_add_u32 s{sT0}, s{sT0}, s{sNQ}")
    a(f"s_mul_i32 s{sT0}, s{sT0}, 12")
    a(f"s_add_u32 s{sT0}, s{sT0}, s{sWAVE}")
    a(f"s_mul_i32 s{sT0}, s{sT0}, {20*1024}")
    a(f"s_mul_i32 s{sT1}, s{sG}, {5*1024}")
    a(f"s_add_u32 s{sT0}, s{sT0}, s{sT1}")
    a(f"s_add_u32 s{sT0}, s{sT0}, {WS_PART}")
    a("v_lshlrev_b32 v4, 4, v1")
    for g in range(4):
        for i in range(5):
            d = 16 + (g*5+i)*4
            if i < 4:
                a(f"buffer_load_dwordx4 {vr(d,4)}, v4, {srd(S_WS)}, s{sT0} offen offset:{i*1024}")
            else:
                a(f"s_add_u32 s{sT1}, s{sT0}, 4096")
                a(f"buffer_load_dwordx4 {vr(d,4)}, v4, {srd(S_WS)}, s{sT1} offen")
        a(f"s_add_u32 s{sT0}, s{sT0}, {3*20*1024}")
    a("v_and_b32 v5, 31, v1")
    a("v_lshrrev_b32 v6, 5, v1")
    a(f"s_mul_i32 s{sT0}, s{sB}, 96")
    a(f"s_lshl_b32 s{sT1}, s{sWAVE}, 5")
    a(f"s_add_u32 s{sT0}, s{sT0}, s{sT1}")
    a(f"v_add_u32 v5, s{sT0}, v5")
    a(f"s_movk_i32 s{sT1}, 2560")
    a(f"v_mul_lo_u32 v5, v5, s{sT1}")
    a("v_lshl_add_u32 v5, v6, 4, v5")
    a(f"s_mul_i32 s{sT0}, s{sBR}, 1280")
    a(f"s_mul_i32 s{sT1}, s{sNQ}, 320")
    a(f"s_add_u32 s{sT0}, s{sT0}, s{sT1}")
    a("s_waitcnt vmcnt(0)")
    for i in range(5):
        for e in range(4):
            d = 16 + i*4 + e
            a(f"v_add_f32 v{d}, v{d}, v{d+20}")
            a(f"v_add_f32 v{d+40}, v{d+40}, v{d+60}")
            a(f"v_add_f32 v{d}, v{d}, v{d+40}")
        d = 16 + i*4
        a(f"v_cvt_pk_bf16_f32 v{d}, v{d}, v{d+1}")
        a(f"v_cvt_pk_bf16_f32 v{d+1}, v{d+2}, v{d+3}")
        a(f"s_mul_i32 s{sT1}, s{sG}, 5")
        a(f"s_add_u32 s{sT1}, s{sT1}, {i}")
        a(f"s_lshr_b32 s{sT2}, s{sT1}, 1")
        a(f"s_lshl_b32 s{sT2}, s{sT2}, 5")
        a(f"s_and_b32 s{sT3}, s{sT1}, 1")
        a(f"s_lshl_b32 s{sT3}, s{sT3}, 3")
        a(f"s_add_u32 s{sT2}, s{sT2}, s{sT3}")
        a(f"s_add_u32 s{sT2}, s{sT2}, s{sT0}")
        a(f"buffer_store_dwordx2 {vr(d,2)}, v5, {srd(S_OUT)}, s{sT2} offen")
    kernel_end(a, kn, 128, 128)

def build(P, kernels=("k1", "k2", "k3")):
    a = Asm()
    launch = {"k1": "; @launch kernel=k1_kernel grid=(256,1,1) block=(256,1,1) lds=163840",
              "k2": "; @launch kernel=k2_kernel grid=(256,1,1) block=(256,1,1) lds=163840",
              "k3": "; @launch kernel=k3_kernel grid=(256,1,1) block=(192,1,1) lds=0"}
    hdr = HDR + "\n".join(launch[k] for k in kernels) + "\n"
    a.raw('.amdgcn_target "amdgcn-amd-amdhsa--gfx950"')
    if "k1" in kernels: gen_k1(a, P)
    if "k2" in kernels: gen_k2(a, P)
    if "k3" in kernels: gen_k3(a, P)
    errs = check_hazards(a.lines)
    body = a.text()
    body += '.section .rodata,"a"\n' + "\n".join(a.desc) + "\n"
    return hdr + body, errs

if __name__ == "__main__":
    out = sys.argv[1] if len(sys.argv) > 1 else "v1.s"
    txt, errs = build({})
    open(out, "w").write(txt)
    print("written", out, len(txt), "bytes; hazards:", len(errs))
```

```python
import sys, struct
from asmlib import Asm, interleave, check_hazards

NAME = "concat_heads__mha_block_cached__mha_block_cached__near_ridge"
HDR = open('cdna_kernels/%s.s.ref' % NAME).read().split("; Override launch")[0]
KB = 1024
SCALE = 1.4426950408889634 / (128 ** 0.5)
def f2u(x): return struct.unpack('<I', struct.pack('<f', x))[0]
THR = 65536.0
WS_O = 0
WS_PART = 16 * 1024 * 1024
WS_FLAG = 40 * 1024 * 1024
WS_DBG = 48 * 1024 * 1024

S_K, S_V, S_WQ, S_X, S_WO, S_WS, S_OUT = 4, 8, 12, 16, 20, 24, 28
sWAVE, sBR, sG, sB, sNQ = 3, 32, 33, 34, 35
sT0, sT1, sT2, sT3 = 36, 37, 38, 39
sDBG = 62
sRET = 66
sRET2 = 68
sUNIT, sCNT, sDELTA, sN, sTHR, sSCALE, sROT = 72, 73, 74, 75, 76, 77, 78
sOFFA, sOFFB, sSLOT, sLO, sHI = 79, 80, 81, 82, 83
sH = 70
sNONCE = 71
sTM = 84
def srd(b): return f"s[{b}:{b+3}]"
STAMPS = False
NST = 12
def stamp(a, i):
    if not STAMPS: return
    a("s_memtime s[98:99]")
    a("s_waitcnt lgkmcnt(0)")
    a(f"s_mov_b32 s{sTM+i}, s98")
def stamp_rt(a, i):
    if not STAMPS: return
    a("s_memrealtime s[98:99]")
    a("s_waitcnt lgkmcnt(0)")
    a(f"s_mov_b32 s{sTM+i}, s98")
def dump_stamps(a):
    if not STAMPS: return
    a("s_lshl_b32 s96, s2, 2")
    a(f"s_add_u32 s96, s96, s{sWAVE}")
    a("s_lshl_b32 s96, s96, 6")
    a(f"s_add_u32 s96, s96, {WS_DBG}")
    a("v_mov_b32 v2, 0")
    for i in range(NST):
        a(f"v_mov_b32 v3, s{sTM+i}")
        a(f"buffer_store_dword v3, v2, {srd(S_WS)}, s96 offen offset:{4*i}")
        a("s_nop 1")

def prologue(a, nwg):
    a(f"s_cmp_ge_u32 s2, {nwg}")
    a("s_cbranch_scc1 L_END")
    a("s_load_dwordx16 s[40:55], s[0:1], 0")
    a("s_load_dwordx4 s[56:59], s[0:1], 64")
    a("s_load_dwordx4 s[60:63], s[0:1], 80")
    a("s_load_dwordx2 s[64:65], s[0:1], 96")
    a("v_lshrrev_b32 v1, 6, v0")
    a("s_and_b32 s36, s2, 7")
    a(f"v_readfirstlane_b32 s{sWAVE}, v1")
    a(f"s_lshr_b32 s{sBR}, s36, 2")
    a(f"s_and_b32 s{sG}, s36, 3")
    a("s_lshr_b32 s36, s2, 3")
    a(f"s_lshr_b32 s{sB}, s36, 2")
    a(f"s_and_b32 s{sNQ}, s36, 3")
    a("v_and_b32 v1, 63, v0")
    a("s_waitcnt lgkmcnt(0)")
    a(f"s_cmp_eq_u32 s{sBR}, 0")
    def mk(dst, ra, rb, nbytes):
        a(f"s_cselect_b32 s{dst}, s{ra}, s{rb}")
        a(f"s_cselect_b32 s{dst+1}, s{ra+1}, s{rb+1}")
        a(f"s_mov_b32 s{dst+2}, {nbytes}")
        a(f"s_mov_b32 s{dst+3}, 0x20000")
    mk(S_X, 40, 50, 8*96*640*2)
    mk(S_K, 42, 52, 8*32*512*128*2)
    mk(S_V, 44, 54, 8*32*512*128*2)
    mk(S_WQ, 46, 56, 640*4096*2)
    mk(S_WO, 48, 58, 4096*640*2)
    for dst, r, nb in ((S_OUT, 60, 8*96*1280*2), (S_WS, 64, 268435456)):
        a(f"s_mov_b32 s{dst}, s{r}")
        a(f"s_mov_b32 s{dst+1}, s{r+1}")
        a(f"s_mov_b32 s{dst+2}, {nb}")
        a(f"s_mov_b32 s{dst+3}, 0x20000")
    for base in (S_X, S_K, S_V, S_WQ, S_WO, S_OUT, S_WS):
        a(f"s_and_b32 s{base+1}, s{base+1}, 0xffff")

vAK, vAV, vAW, vAX = 16, 24, 28, 32
vL, vPS, vPSB = 36, 37, 38
vAO, vAB = 40, 41
QACC = 48
S0, S1, NEG, P0, P1 = 48, 64, 80, 96, 104
VF = 112
OACC = 176
TMP = 240
aX, aQF, aKF = 0, 160, 192
aACC2, aRING = 0, 80

def vr(b, n): return f"v[{b}:{b+n-1}]"
def ar(b, n): return f"a[{b}:{b+n-1}]"

def lane_setup_compute(a):
    a("v_lshrrev_b32 v2, 5, v1")
    a("v_and_b32 v3, 31, v1")
    a("v_and_b32 v4, 15, v1")
    a("v_xor_b32 v4, v4, v2")
    a("v_lshlrev_b32 v5, 8, v3")
    for s in range(8):
        a(f"v_xor_b32 v6, {2*s}, v4")
        a(f"v_lshl_add_u32 v{vAK+s}, v6, 4, v5")
    a("v_lshrrev_b32 v6, 2, v1")
    a("v_and_b32 v6, 3, v6")
    a("v_and_b32 v7, 3, v1")
    a("v_and_b32 v8, 1, v7")
    a("v_lshlrev_b32 v8, 1, v8")
    a("v_lshrrev_b32 v9, 1, v7")
    a("v_or_b32 v8, v8, v9")
    a("v_lshlrev_b32 v8, 3, v8")
    a("v_lshrrev_b32 v9, 4, v1")
    a("v_and_b32 v9, 1, v9")
    a("v_lshl_add_u32 v8, v9, 5, v8")
    a("v_lshl_add_u32 v10, v2, 2, v6")
    a("v_lshlrev_b32 v10, 8, v10")
    a("v_add_u32 v10, v10, v8")
    a("v_lshl_add_u32 v11, v2, 3, v6")
    a(f"s_movk_i32 s{sT0}, 320")
    a(f"v_mul_lo_u32 v{vAO}, v11, s{sT0}")
    a(f"v_add_u32 v{vAO}, v{vAO}, v8")
    a("v_lshlrev_b32 v11, 8, v11")
    a("v_add_u32 v11, v11, v8")
    for t in range(4):
        a(f"v_xor_b32 v12, {t}, v6")
        a(f"v_lshlrev_b32 v12, 6, v12")
        a(f"v_add_u32 v{vAV+t}, v10, v12")
        a(f"v_add_u32 v{vAW+t}, v11, v12")
        a(f"v_add_u32 v{vAV+t}, {16*KB}, v{vAV+t}")
    a(f"s_lshl_b32 s{sT0}, s{sWAVE}, 5")
    a(f"v_add_u32 v12, s{sT0}, v3")
    a("v_lshrrev_b32 v13, 1, v12")
    a("v_and_b32 v13, 7, v13")
    a("v_xor_b32 v13, v13, v2")
    a("v_lshlrev_b32 v14, 7, v12")
    for s in range(4):
        a(f"v_xor_b32 v15, {2*s}, v13")
        a(f"v_lshl_add_u32 v{vAX+s}, v15, 4, v14")
        a(f"v_add_u32 v{vAX+s}, {16*KB}, v{vAX+s}")
    a(f"s_lshl_b32 s{sT0}, s{sWAVE}, 12")
    a(f"s_add_u32 s{sT0}, s{sT0}, {20*KB}")
    a(f"v_lshlrev_b32 v{vAB}, 4, v1")
    a(f"v_add_u32 v{vAB}, s{sT0}, v{vAB}")

Q1_BASE = lambda q: 64*KB + (q % 3) * 32*KB
Q2_BASE = lambda q: 96*KB + (q % 4) * 16*KB

def frag_q(setid, s, t):
    idx = (s * 4 + t) * 4
    return (OACC + idx) if setid == 0 else (VF + idx)

def q_phase(a):
    a.label("L_qphase")
    for q in range(11):
        a("s_barrier")
        pre = []; reads = []
        if q <= 9:
            p1 = Q1_BASE(q-1) if q > 0 else 0
            p2 = Q2_BASE(q-1) if q > 0 else 0
            a(f"s_cmp_eq_u32 s{sUNIT}, 0")
            a(f"s_mov_b32 s{sT0}, {(Q1_BASE(q)-p1) & 0xffffffff}")
            a(f"s_cselect_b32 s{sDELTA}, s{sT0}, {(Q2_BASE(q)-p2) & 0xffffffff}")
            for t in range(4):
                a(f"v_add_u32 v{vAW+t}, s{sDELTA}, v{vAW+t}")
            a(f"s_cbranch_scc0 L_qx_skip{q}")
            for s in range(4):
                a(f"v_add_u32 v{vAX+s}, s{sDELTA}, v{vAX+s}")
            for s in range(4):
                a(f"ds_read_b128 {ar(aX + (q*4+s)*4, 4)}, v{vAX+s}")
            a.label(f"L_qx_skip{q}")
            for s in range(4):
                for t in range(4):
                    f = frag_q(q & 1, s, t)
                    for jj in range(2):
                        reads.append(f"ds_read_b64_tr_b16 {vr(f+2*jj, 2)}, v{vAW+t} offset:{(16*s+4*jj)*256}")
        mf = []
        if q >= 1:
            p = q - 1
            for s in range(4):
                for t in range(4):
                    f = frag_q(p & 1, s, t)
                    c = "0" if (p == 0 and s == 0) else vr(QACC+16*t, 16)
                    mf.append(f"v_mfma_f32_32x32x16_bf16 {vr(QACC+16*t,16)}, {vr(f,4)}, {ar(aX+(p*4+s)*4,4)}, {c}")
        if q == 10:
            fill = [f"v_mov_b32 v{OACC+i}, 0" for i in range(64)]
            seq = interleave(mf, fill)
        elif mf:
            seq = interleave(mf, reads, every=3)
        else:
            seq = reads
        for ins in seq: a(ins)
        a("s_waitcnt lgkmcnt(0)")
    a(f"s_cmp_eq_u32 s{sUNIT}, 0")
    a(f"s_mov_b32 s{sT0}, {(-Q1_BASE(9)) & 0xffffffff}")
    a(f"s_cselect_b32 s{sDELTA}, s{sT0}, {(-Q2_BASE(9)) & 0xffffffff}")
    for t in range(4):
        a(f"v_add_u32 v{vAW+t}, s{sDELTA}, v{vAW+t}")
    a("s_nop 7")
    for t in range(4):
        for r in range(0, 16, 2):
            src = QACC + 16*t + r
            tmp = TMP + (r % 8)
            a(f"v_mul_f32 v{tmp}, s{sSCALE}, v{src}")
            a(f"v_mul_f32 v{tmp+1}, s{sSCALE}, v{src+1}")
            a(f"v_cvt_pk_bf16_f32 v{tmp}, v{tmp}, v{tmp+1}")
            a(f"v_accvgpr_write_b32 a{aQF + (2*t + r//8)*4 + (r%8)//2}, v{tmp}")
    a(f"s_setpc_b64 s[{sRET}:{sRET+1}]")

def sm_list(S, P):
    L = []
    for r in range(0, 16, 4):
        for e in range(4):
            L.append(f"v_exp_f32 v{TMP+r+e}, v{S+r+e}")
        if r == 0:
            L.append(f"v_add_f32 v{vPS}, v{TMP}, v{TMP+1}")
            L.append(f"v_add_f32 v{vPSB}, v{TMP+2}, v{TMP+3}")
        else:
            L.append(f"v_add_f32 v{vPS}, v{vPS}, v{TMP+r}")
            L.append(f"v_add_f32 v{vPSB}, v{vPSB}, v{TMP+r+2}")
            L.append(f"v_add_f32 v{vPS}, v{vPS}, v{TMP+r+1}")
            L.append(f"v_add_f32 v{vPSB}, v{vPSB}, v{TMP+r+3}")
        L.append(f"v_cvt_pk_bf16_f32 v{P+r//2}, v{TMP+r}, v{TMP+r+1}")
        L.append(f"v_cvt_pk_bf16_f32 v{P+r//2+1}, v{TMP+r+2}, v{TMP+r+3}")
    L.append(f"v_add_f32 v{vPS}, v{vPS}, v{vPSB}")
    return L

def qk_mfma(T, s, czero=False):
    S = S0 if T == 0 else S1
    c = ("0" if czero else vr(NEG, 16)) if s == 0 else vr(S, 16)
    return f"v_mfma_f32_32x32x16_bf16 {vr(S,16)}, {ar(aKF + (T*8+s)*4, 4)}, {ar(aQF+4*s,4)}, {c}"
def pv_mfma(T, m, t):
    P = P0 if T == 0 else P1
    return f"v_mfma_f32_32x32x16_bf16 {vr(OACC+16*t,16)}, {vr(VF + ((T*2+m)*4+t)*4, 4)}, {vr(P+4*m,4)}, {vr(OACC+16*t,16)}"
def k_read(T, s):
    return f"ds_read_b128 {ar(aKF+(T*8+s)*4,4)}, v{vAK+s} offset:{T*8192}"
def v_read(T, m, t, jj):
    return f"ds_read_b64_tr_b16 {vr(VF+((T*2+m)*4+t)*4+2*jj,2)}, v{vAV+t} offset:{(32*T+16*m+8*jj)*256}"

def rowmax(a, S):
    a(f"v_max3_f32 v2, v{S}, v{S+1}, v{S+2}")
    for r in range(3, 15, 2):
        a(f"v_max3_f32 v2, v2, v{S+r}, v{S+r+1}")
    a(f"v_max_f32 v2, v2, v{S+15}")
    a("v_mov_b32 v3, v2")
    a("s_nop 1")
    a("v_permlane32_swap_b32 v2, v3")
    a("v_max_f32 v2, v2, v3")

def slow_path(a, T):
    S = S0 if T == 0 else S1
    So = S1 if T == 0 else S0
    P = P0 if T == 0 else P1
    a.label(f"L_slow{T}")
    a("s_nop 15")
    a("s_nop 7")
    rowmax(a, S)
    a("v_max_f32 v2, 0, v2")
    a("v_sub_f32 v3, 0, v2")
    a("v_exp_f32 v3, v3")
    a("s_nop 0")
    a(f"v_mul_f32 v{vL}, v{vL}, v3")
    for i in range(64):
        a(f"v_mul_f32 v{OACC+i}, v{OACC+i}, v3")
    for i in range(16):
        a(f"v_sub_f32 v{NEG+i}, v{NEG+i}, v2")
    for i in range(16):
        a(f"v_sub_f32 v{S+i}, v{S+i}, v2")
    for i in range(16):
        a(f"v_sub_f32 v{So+i}, v{So+i}, v2")
    for ins in sm_list(S, P): a(ins)
    a("s_nop 1")
    a(f"s_branch L_cont{T}")

def unit_prologue(a):
    a.label("L_uprol")
    a(f"s_cmp_eq_u32 s{sUNIT}, 0")
    a("s_cbranch_scc0 L_uprol_nok")
    for T in range(2):
        for s in range(8):
            a(k_read(T, s))
    a("s_waitcnt lgkmcnt(0)")
    a.label("L_uprol_nok")
    for s in range(8):
        a(qk_mfma(0, s, czero=True))
    for i in range(8): a(f"v_mov_b32 v{P1+i}, 0")
    for i in range(32): a(f"v_mov_b32 v{VF+32+i}, 0")
    a(f"v_mov_b32 v{vL}, 0")
    a("s_nop 7")
    rowmax(a, S0)
    for i in range(16):
        a(f"v_sub_f32 v{NEG+i}, 0, v2")
    for i in range(16):
        a(f"v_sub_f32 v{S0+i}, v{S0+i}, v2")
    a(f"s_setpc_b64 s[{sRET}:{sRET+1}]")

def attn_half(a, T, adv):
    O = 1 - T
    mf = []
    for i in range(8):
        mf.append(qk_mfma(O, i))
        mf.append(pv_mfma(O, i // 4, i % 4))
    reads = [k_read(T, s) for s in range(8)] + [v_read(T, m, t, jj) for m in range(2) for t in range(4) for jj in range(2)]
    sm = sm_list(S0 if T == 0 else S1, P0 if T == 0 else P1)
    addr = []
    if adv:
        addr = [f"v_add_u32 v{vAK+s}, s{sDELTA}, v{vAK+s}" for s in range(8)] + [f"v_add_u32 v{vAV+t}, s{sDELTA}, v{vAV+t}" for t in range(4)]
    gaps = [[] for _ in range(16)]
    if adv:
        gaps[0] += addr[:6]; gaps[1] += addr[6:]
        r0 = 2
    else:
        r0 = 0
    ri = 0
    for g in range(r0, 16):
        n = 2 if g < r0 + 12 else 0
        for _ in range(n):
            if ri < len(reads):
                gaps[g].append(reads[ri]); ri += 1
    assert ri == len(reads), (ri, len(reads))
    s0 = 2
    ng = 16 - s0
    si = 0
    for g in range(s0, 16):
        tgt = (len(sm) * (g - s0 + 1) + ng - 1) // ng
        while si < tgt:
            gaps[g].append(sm[si]); si += 1
    for g in range(16):
        a(mf[g])
        for ins in gaps[g]: a(ins)
    a(f"v_cmp_nge_f32 vcc, s{sTHR}, v{vPS}")
    a("s_waitcnt lgkmcnt(0)")
    a(f"s_cbranch_vccnz L_slow{T}")
    a.label(f"L_cont{T}")
    a(f"v_add_f32 v{vL}, v{vL}, v{vPS}")

def attn_loop(a):
    a.label("L_attn")
    a("s_barrier")
    attn_half(a, 0, True)
    attn_half(a, 1, False)
    a(f"s_add_u32 s{sSLOT}, s{sSLOT}, 1")
    a(f"s_cmp_eq_u32 s{sSLOT}, 3")
    a(f"s_cselect_b32 s{sSLOT}, 0, s{sSLOT}")
    a(f"s_mov_b32 s{sT0}, {32*KB}")
    a(f"s_cmp_eq_u32 s{sSLOT}, 0")
    a(f"s_cselect_b32 s{sDELTA}, {(-64*KB) & 0xffffffff}, s{sT0}")
    a(f"s_sub_u32 s{sN}, s{sN}, 1")
    a(f"s_cmp_lg_u32 s{sN}, 0")
    a("s_cbranch_scc1 L_attn")
    a(f"s_setpc_b64 s[{sRET}:{sRET+1}]")

def unit_epilogue(a):
    a.label("L_uepi")
    for m in range(2):
        for t in range(4):
            a(pv_mfma(1, m, t))
    a(f"v_mov_b32 v2, v{vL}")
    a(f"v_mov_b32 v3, v{vL}")
    a(f"s_lshl_b32 s{sT0}, s{sBR}, 3")
    a("v_permlane32_swap_b32 v2, v3") if False else None
    a(f"s_add_u32 s{sT0}, s{sT0}, s{sB}")
    a("v_permlane32_swap_b32 v2, v3")
    a(f"s_lshl_b32 s{sT0}, s{sT0}, 5")
    a("v_add_f32 v2, v2, v3")
    a(f"s_add_u32 s{sT0}, s{sT0}, s{sH}")
    a("v_rcp_f32 v2, v2")
    a(f"s_mul_i32 s{sT0}, s{sT0}, 3")
    a(f"s_add_u32 s{sT0}, s{sT0}, s{sWAVE}")
    a(f"s_lshl_b32 s{sT0}, s{sT0}, 13")
    a(f"s_add_u32 s{sT0}, s{sT0}, {WS_O}")
    a("v_lshlrev_b32 v4, 4, v1")
    a("s_nop 7")
    for t in range(4):
        for hf in range(2):
            base = OACC + 16*t + 8*hf
            d = TMP + 4*((t*2+hf) % 4)
            for e in range(0, 8):
                a(f"v_mul_f32 v{base+e}, v{base+e}, v2")
            for e in range(0, 8, 2):
                a(f"v_cvt_pk_bf16_f32 v{d+e//2}, v{base+e}, v{base+e+1}")
            s = 2*t + hf
            a(f"buffer_store_dwordx4 {vr(d,4)}, v4, {srd(S_WS)}, s{sT0} offen offset:{(s%4)*1024} sc1")
            if s % 4 == 3:
                a(f"s_add_u32 s{sT0}, s{sT0}, 4096")
    a("s_waitcnt vmcnt(0)")
    a(f"s_setpc_b64 s[{sRET}:{sRET+1}]")

def oproj(a):
    def fa(ks, t): return aRING + (ks*5 + t)*4
    def fb(ks): return TMP + ks*4
    def reads(ks):
        L = [f"ds_read_b128 {vr(fb(ks),4)}, v{vAB} offset:{ks*1024}"]
        for t in range(5):
            for jj in range(2):
                L.append(f"ds_read_b64_tr_b16 {ar(fa(ks,t)+2*jj,2)}, v{vAO} offset:{(16*ks+4*jj)*320+64*t}")
        return L
    def mf(ks):
        return [f"v_mfma_f32_32x32x16_bf16 {ar(aACC2+16*t,16)}, {ar(fa(ks,t),4)}, {vr(fb(ks),4)}, {ar(aACC2+16*t,16)}" for t in range(5)]
    a.label("L_oproj")
    a(f"s_mov_b32 s{sCNT}, 0")
    a(f"v_add_u32 v{vAO}, s{sOFFA}, v{vAO}")
    a(f"v_add_u32 v{vAB}, s{sOFFA}, v{vAB}")
    a.label("L_oproj_loop")
    a("s_barrier")
    a(f"s_cmp_eq_u32 s{sCNT}, 0")
    a("s_cbranch_scc0 L_oproj_n1")
    for ins in reads(0) + reads(1): a(ins)
    a("s_branch L_oproj_n2")
    a.label("L_oproj_n1")
    for ins in interleave(mf(2) + mf(3), reads(0) + reads(1), every=3): a(ins)
    a.label("L_oproj_n2")
    a("s_waitcnt lgkmcnt(0)")
    for ins in interleave(mf(0) + mf(1), reads(2) + reads(3), every=3): a(ins)
    a(f"s_add_u32 s{sT0}, s{sOFFA}, {32*KB}")
    a(f"s_cmp_ge_u32 s{sT0}, s{sHI}")
    a(f"s_cselect_b32 s{sT0}, s{sLO}, s{sT0}")
    a(f"s_sub_u32 s{sDELTA}, s{sT0}, s{sOFFA}")
    a(f"s_mov_b32 s{sOFFA}, s{sT0}")
    a(f"s_add_u32 s{sCNT}, s{sCNT}, 1")
    a(f"s_cmp_lt_u32 s{sCNT}, 8")
    a("s_waitcnt lgkmcnt(0)")
    a(f"v_add_u32 v{vAO}, s{sDELTA}, v{vAO}")
    a(f"v_add_u32 v{vAB}, s{sDELTA}, v{vAB}")
    a("s_cbranch_scc1 L_oproj_loop")
    for ins in mf(2) + mf(3): a(ins)
    a(f"s_sub_u32 s{sT0}, 0, s{sOFFA}")
    a(f"v_add_u32 v{vAO}, s{sT0}, v{vAO}")
    a(f"v_add_u32 v{vAB}, s{sT0}, v{vAB}")
    a(f"s_setpc_b64 s[{sRET}:{sRET+1}]")

def call(a, lbl, ret=sRET):
    a(f"s_call_b64 s[{ret}:{ret+1}], {lbl}")

def final_exchange(a):
    a("s_nop 7")
    a("s_nop 7")
    a(f"s_lshl_b32 s{sT0}, s{sBR}, 3")
    a(f"s_add_u32 s{sT0}, s{sT0}, s{sB}")
    a(f"s_lshl_b32 s{sT0}, s{sT0}, 2")
    a(f"s_add_u32 s{sT0}, s{sT0}, s{sNQ}")
    a(f"s_mul_i32 s{sT1}, s{sT0}, {4*4*3*5*1024}")
    a(f"s_add_u32 s{sT1}, s{sT1}, {WS_PART}")
    a(f"s_mul_i32 s{sT2}, s{sWAVE}, {5*1024}")
    a(f"s_add_u32 s{sT1}, s{sT1}, s{sT2}")
    a("v_lshlrev_b32 v4, 4, v1")
    for dst in range(4):
        a(f"s_cmp_eq_u32 s{sG}, {dst}")
        a(f"s_cbranch_scc1 L_fx_skip{dst}")
        a(f"s_mul_i32 s{sT2}, s{sG}, {3*5*1024}")
        a(f"s_add_u32 s{sT2}, s{sT2}, {dst*4*3*5*1024}")
        a(f"s_add_u32 s{sT2}, s{sT2}, s{sT1}")
        for i in range(5):
            R = 5*dst + i
            if i == 4:
                a(f"s_add_u32 s{sT2}, s{sT2}, 4096")
            a(f"buffer_store_dwordx4 {ar(aACC2+4*R,4)}, v4, {srd(S_WS)}, s{sT2} offen offset:{(i%4)*1024} sc1")
        a.label(f"L_fx_skip{dst}")
    for g in range(4):
        a(f"s_cmp_eq_u32 s{sG}, {g}")
        a(f"s_cbranch_scc0 L_fx_own{g}")
        for i in range(20):
            a(f"v_accvgpr_read_b32 v{48+i}, a{aACC2+20*g+i}")
        a.label(f"L_fx_own{g}")
    a("s_waitcnt vmcnt(0)")
    a("s_barrier")
    a("s_barrier")
    a(f"s_mul_i32 s{sT2}, s{sG}, {4*3*5*1024}")
    a(f"s_add_u32 s{sT1}, s{sT1}, s{sT2}")
    for k in range(1, 4):
        a(f"s_add_u32 s{sT2}, s{sG}, {k}")
        a(f"s_and_b32 s{sT2}, s{sT2}, 3")
        a(f"s_mul_i32 s{sT2}, s{sT2}, {3*5*1024}")
        a(f"s_add_u32 s{sT2}, s{sT2}, s{sT1}")
        for i in range(5):
            if i == 4:
                a(f"s_add_u32 s{sT2}, s{sT2}, 4096")
            d = 68 + (k-1)*20 + 4*i
            a(f"buffer_load_dwordx4 {vr(d,4)}, v4, {srd(S_WS)}, s{sT2} offen offset:{(i%4)*1024} sc1")
    a("v_and_b32 v5, 31, v1")
    a("v_lshrrev_b32 v6, 5, v1")
    a(f"s_mul_i32 s{sT0}, s{sB}, 96")
    a(f"s_lshl_b32 s{sT1}, s{sWAVE}, 5")
    a(f"s_add_u32 s{sT0}, s{sT0}, s{sT1}")
    a(f"v_add_u32 v5, s{sT0}, v5")
    a(f"s_movk_i32 s{sT1}, 2560")
    a(f"v_mul_lo_u32 v5, v5, s{sT1}")
    a("v_lshl_add_u32 v5, v6, 4, v5")
    a(f"s_mul_i32 s{sT0}, s{sBR}, 1280")
    a(f"s_mul_i32 s{sT1}, s{sNQ}, 320")
    a(f"s_add_u32 s{sT0}, s{sT0}, s{sT1}")
    a("s_waitcnt vmcnt(0)")
    for i in range(5):
        for e in range(4):
            d = 48 + i*4 + e
            a(f"v_add_f32 v{d}, v{d}, v{d+20}")
            a(f"v_add_f32 v{d+40}, v{d+40}, v{d+60}")
            a(f"v_add_f32 v{d}, v{d}, v{d+40}")
        d = 48 + i*4
        a(f"v_cvt_pk_bf16_f32 v{d}, v{d}, v{d+1}")
        a(f"v_cvt_pk_bf16_f32 v{d+1}, v{d+2}, v{d+3}")
        a(f"s_mul_i32 s{sT1}, s{sG}, 5")
        a(f"s_add_u32 s{sT1}, s{sT1}, {i}")
        a(f"s_lshr_b32 s{sT2}, s{sT1}, 1")
        a(f"s_lshl_b32 s{sT2}, s{sT2}, 5")
        a(f"s_and_b32 s{sT3}, s{sT1}, 1")
        a(f"s_lshl_b32 s{sT3}, s{sT3}, 3")
        a(f"s_add_u32 s{sT2}, s{sT2}, s{sT3}")
        a(f"s_add_u32 s{sT2}, s{sT2}, s{sT0}")
        a(f"buffer_store_dwordx2 {vr(d,2)}, v5, {srd(S_OUT)}, s{sT2} offen")

class VmQ:
    def __init__(self): self.n = 0; self.mark = {}
    def issued(self, tag, cnt):
        self.n += cnt; self.mark[tag] = self.n
    def wait(self, *tags):
        later = min(self.n - self.mark[t] for t in tags)
        return f"s_waitcnt vmcnt({min(later, 63)})"

vKo, vVo, vWq_, vXo, vWo_, vLin, vZ = 16, 20, 24, 28, 32, 37, 38
vPOLL = 40
def loader_setup(a):
    a("v_lshrrev_b32 v2, 4, v1")
    a("v_and_b32 v3, 15, v1")
    for e in range(4):
        a(f"v_add_u32 v4, {4*e}, v2")
        a("v_xor_b32 v4, v4, v3")
        a("v_lshlrev_b32 v4, 4, v4")
        a(f"v_lshl_add_u32 v{vKo+e}, v2, 8, v4")
    a("v_lshlrev_b32 v4, 2, v2")
    a("v_xor_b32 v4, v4, v3")
    a("v_lshlrev_b32 v4, 4, v4")
    a(f"v_lshl_add_u32 v{vVo}, v2, 8, v4")
    a("v_lshlrev_b32 v5, 13, v2")
    a("v_add_u32 v5, v5, v4")
    for e in range(4):
        a(f"v_add_u32 v{vWq_+e}, {e*(32768-1024)}, v5")
    a("v_lshrrev_b32 v6, 3, v1")
    a("v_and_b32 v7, 7, v1")
    a(f"s_movk_i32 s{sT0}, 1280")
    a(f"v_mul_lo_u32 v6, v6, s{sT0}")
    for e in range(4):
        a(f"v_add_u32 v8, {4*(e&1)}, v2")
        a("v_xor_b32 v8, v8, v7")
        a("v_lshl_add_u32 v8, v8, 4, v6")
        a(f"v_add_u32 v{vXo+e}, {e*(10240-1024)}, v8")
    a(f"s_movk_i32 s{sT0}, 3277")
    for e in range(5):
        a(f"v_add_u32 v2, {64*e}, v1")
        a(f"v_mul_lo_u32 v3, v2, s{sT0}")
        a("v_lshrrev_b32 v3, 16, v3")
        a("v_mul_u32_u24 v4, 20, v3")
        a("v_sub_u32 v4, v2, v4")
        a("v_mul_u32_u24 v3, 1280, v3")
        a("v_lshl_add_u32 v3, v4, 4, v3")
        if e < 4: a(f"v_subrev_u32 v{vWo_+e}, {e*1024}, v3")
        else: a(f"v_mov_b32 v{vWo_+e}, v3")
    a(f"v_lshlrev_b32 v{vLin}, 4, v1")
    a(f"v_mov_b32 v{vZ}, 0")

def loader_routines(a, P):
    ret = f"s_setpc_b64 s[{sRET}:{sRET+1}]"
    pol = " nt" if P.get('nt', True) else ""
    a.label("L_ldk")
    for m in range(4):
        a(f"s_add_u32 m0, s{sOFFB}, {m*4096}")
        a(f"s_add_u32 s{sT0}, s{sOFFA}, {m*4096}")
        for e in range(4):
            a(f"buffer_load_dwordx4 v{vKo+e}, {srd(S_K)}, s{sT0} offen offset:{e*1024}{pol} lds")
    a(ret)
    a.label("L_ldv")
    for m in range(4):
        a(f"s_add_u32 m0, s{sOFFB}, {m*4096}")
        a(f"s_add_u32 s{sT0}, s{sOFFA}, {m*4096}")
        for e in range(4):
            a(f"buffer_load_dwordx4 v{vVo}, {srd(S_V)}, s{sT0} offen offset:{e*1024}{pol} lds")
    a(ret)
    a.label("L_ldwq")
    for m in range(4):
        a(f"s_add_u32 m0, s{sOFFB}, {m*4096}")
        a(f"s_add_u32 s{sT0}, s{sOFFA}, {m*131072}")
        for e in range(4):
            a(f"buffer_load_dwordx4 v{vWq_+e}, {srd(S_WQ)}, s{sT0} offen offset:{e*1024} lds")
    a(ret)
    a.label("L_ldx")
    for m in range(3):
        a(f"s_add_u32 m0, s{sOFFB}, {m*4096}")
        a(f"s_add_u32 s{sT0}, s{sOFFA}, {m*40960}")
        for e in range(4):
            a(f"buffer_load_dwordx4 v{vXo+e}, {srd(S_X)}, s{sT0} offen offset:{e*1024} lds")
    a(ret)
    a.label("L_ldwo")
    for m in range(4):
        a(f"s_add_u32 m0, s{sOFFB}, {m*5*1024}")
        a(f"s_add_u32 s{sT0}, s{sOFFA}, {m*16*1280}")
        for e in range(4):
            a(f"buffer_load_dwordx4 v{vWo_+e}, {srd(S_WO)}, s{sT0} offen offset:{e*1024} lds")
        a(f"s_add_u32 m0, s{sOFFB}, {m*5*1024 + 4096}")
        a("s_nop 0")
        a(f"buffer_load_dwordx4 v{vWo_+4}, {srd(S_WO)}, s{sT0} offen lds")
    a(ret)
    a.label("L_ldo")
    for j in range(3):
        a(f"s_add_u32 m0, s{sOFFB}, {j*4096}")
        a(f"s_add_u32 s{sT0}, s{sOFFA}, {j*8192}")
        for e in range(4):
            a(f"buffer_load_dwordx4 v{vLin}, {srd(S_WS)}, s{sT0} offen offset:{e*1024} sc1 lds")
    a(ret)
    a.label("L_poll")
    a(f"s_mov_b32 s{sT1}, 0")
    a.label("L_poll_loop")
    a(f"buffer_load_dwordx4 {vr(vPOLL,4)}, v{vZ}, {srd(S_WS)}, s{sOFFA} offen sc1")
    a("s_waitcnt vmcnt(0)")
    for e in range(4):
        a(f"v_xor_b32 v{vPOLL+e}, s{sNONCE}, v{vPOLL+e}")
    a(f"v_or_b32 v{vPOLL}, v{vPOLL}, v{vPOLL+1}")
    a(f"v_or_b32 v{vPOLL+2}, v{vPOLL+2}, v{vPOLL+3}")
    a(f"v_or_b32 v{vPOLL}, v{vPOLL}, v{vPOLL+2}")
    a("s_nop 0")
    a(f"v_readfirstlane_b32 s{sT0}, v{vPOLL}")
    a(f"s_add_u32 s{sT1}, s{sT1}, 1")
    a(f"s_cmp_eq_u32 s{sT0}, 0")
    a("s_cbranch_scc1 L_poll_done")
    a(f"s_cmp_ge_u32 s{sT1}, {P.get('spin', 200000)}")
    a("s_cbranch_scc1 L_poll_done")
    a("s_sleep 1")
    a("s_branch L_poll_loop")
    a.label("L_poll_done")
    a(ret)

def loader_main(a, P):
    V = VmQ()
    mA = P.get('mA', 4)
    sCH, sXB, sU0, sU1, sH1, sWOB, sOB, sF1, sF3 = 40, 41, 42, 43, 44, 45, 46, 47, 48
    a(f"s_lshl_b32 s{sH1}, s{sG}, 3")
    a(f"s_add_u32 s{sH1}, s{sH1}, s{sNQ}")
    a(f"s_lshl_b32 s{sT2}, s{sB}, 5")
    a(f"s_add_u32 s{sU0}, s{sT2}, s{sH1}")
    a(f"s_lshl_b32 s{sU0}, s{sU0}, 17")
    a(f"s_add_u32 s{sU1}, s{sU0}, {4 << 17}")
    a(f"s_mul_i32 s{sXB}, s{sB}, {96*1280}")
    a(f"s_mul_i32 s{sT2}, s{sNQ}, 5")
    a(f"s_lshr_b32 s{sT2}, s{sT2}, 1")
    a(f"s_add_u32 s{sROT}, s{sT2}, s{sB}")
    a(f"s_cmp_ge_u32 s{sROT}, 10")
    a(f"s_cselect_b32 s{sT2}, 10, 0")
    a(f"s_sub_u32 s{sROT}, s{sROT}, s{sT2}")
    a(f"s_mul_i32 s{sWOB}, s{sG}, {8*128*1280}")
    a(f"s_mul_i32 s{sT1}, s{sNQ}, 320")
    a(f"s_add_u32 s{sWOB}, s{sWOB}, s{sT1}")
    a(f"s_lshl_b32 s{sOB}, s{sBR}, 3")
    a(f"s_add_u32 s{sOB}, s{sOB}, s{sB}")
    a(f"s_lshl_b32 s{sOB}, s{sOB}, 5")
    a(f"s_lshl_b32 s{sT1}, s{sG}, 3")
    a(f"s_add_u32 s{sOB}, s{sOB}, s{sT1}")
    a(f"s_mul_i32 s{sOB}, s{sOB}, {3*8*1024}")
    a(f"s_add_u32 s{sOB}, s{sOB}, {WS_O}")
    a(f"s_lshl_b32 s{sF1}, s{sBR}, 2")
    a(f"s_add_u32 s{sF1}, s{sF1}, s{sG}")
    a(f"s_lshl_b32 s{sF1}, s{sF1}, 3")
    a(f"s_add_u32 s{sF1}, s{sF1}, s{sB}")
    a(f"s_lshl_b32 s{sF1}, s{sF1}, 7")
    a(f"s_add_u32 s{sF1}, s{sF1}, {WS_FLAG}")
    a(f"s_lshl_b32 s{sF3}, s{sBR}, 3")
    a(f"s_add_u32 s{sF3}, s{sF3}, s{sB}")
    a(f"s_lshl_b32 s{sF3}, s{sF3}, 2")
    a(f"s_add_u32 s{sF3}, s{sF3}, s{sNQ}")
    a(f"s_lshl_b32 s{sF3}, s{sF3}, 7")
    a(f"s_add_u32 s{sF3}, s{sF3}, {WS_FLAG + 32*KB}")

    def set_chunk(q):
        a(f"s_add_u32 s{sCH}, s{sROT}, {q}")
        a(f"s_cmp_ge_u32 s{sCH}, 10")
        a(f"s_cselect_b32 s{sT2}, 10, 0")
        a(f"s_sub_u32 s{sCH}, s{sCH}, s{sT2}")
    def wq_tile(q, unit, base):
        set_chunk(q)
        a(f"s_lshl_b32 s{sOFFA}, s{sCH}, 19")
        a(f"s_lshl_b32 s{sT2}, s{sH1}, 8")
        a(f"s_add_u32 s{sOFFA}, s{sOFFA}, s{sT2}")
        if unit == 1: a(f"s_add_u32 s{sOFFA}, s{sOFFA}, 1024")
        a(f"s_mov_b32 s{sOFFB}, {base}")
        call(a, "L_ldwq")
    def tile_q1(q):
        wq_tile(q, 0, Q1_BASE(q))
        a(f"s_lshl_b32 s{sOFFA}, s{sCH}, 7")
        a(f"s_add_u32 s{sOFFA}, s{sOFFA}, s{sXB}")
        a(f"s_mov_b32 s{sOFFB}, {Q1_BASE(q) + 16*KB}")
        call(a, "L_ldx")
        V.issued(('Q1', q), 28)
    def tile_q2(q):
        wq_tile(q, 1, Q2_BASE(q))
        V.issued(('Q2', q), 16)
    def kv(n):
        cnt = 0
        base = (n % 3) * 32*KB
        if n <= 15:
            u, c = (sU0, n) if n <= 7 else (sU1, n - 8)
            a(f"s_add_u32 s{sOFFA}, s{u}, {c*16384}")
            a(f"s_mov_b32 s{sOFFB}, {base}")
            call(a, "L_ldk"); cnt += 16
        if n >= 1:
            u, c = (sU0, n - 1) if n <= 8 else (sU1, n - 9)
            a(f"s_add_u32 s{sOFFA}, s{u}, {c*16384}")
            a(f"s_mov_b32 s{sOFFB}, {base + 16*KB}")
            call(a, "L_ldv"); cnt += 16
        V.issued(('KV', n), cnt)
    def o_rot(i):
        a(f"s_lshl_b32 s{sCH}, s{sNQ}, 1")
        a(f"s_add_u32 s{sCH}, s{sCH}, {i}")
        a(f"s_and_b32 s{sCH}, s{sCH}, 7")
    def wo_tile(ph, i, base):
        o_rot(i)
        a(f"s_mul_i32 s{sOFFA}, s{sCH}, {64*1280}")
        a(f"s_add_u32 s{sOFFA}, s{sOFFA}, s{sWOB}")
        if ph == 1: a(f"s_add_u32 s{sOFFA}, s{sOFFA}, {4*128*1280}")
        a(f"s_mov_b32 s{sOFFB}, {base}")
        call(a, "L_ldwo")
        V.issued(('WO', ph, i), 20)
    def o_tile(ph, i, base):
        o_rot(i)
        a(f"s_lshr_b32 s{sT2}, s{sCH}, 1")
        a(f"s_mul_i32 s{sOFFA}, s{sT2}, {3*8*1024}")
        a(f"s_and_b32 s{sT2}, s{sCH}, 1")
        a(f"s_lshl_b32 s{sT2}, s{sT2}, 12")
        a(f"s_add_u32 s{sOFFA}, s{sOFFA}, s{sT2}")
        a(f"s_add_u32 s{sOFFA}, s{sOFFA}, s{sOB}")
        if ph == 1: a(f"s_add_u32 s{sOFFA}, s{sOFFA}, {4*3*8*1024}")
        a(f"s_mov_b32 s{sOFFB}, {base + 20*KB}")
        call(a, "L_ldo")
        V.issued(('O', ph, i), 12)
    def flag_store(sbase, extra, sidx):
        a(f"s_lshl_b32 s{sT2}, s{sidx}, 2")
        a(f"s_add_u32 s{sT2}, s{sT2}, s{sbase}")
        if extra: a(f"s_add_u32 s{sT2}, s{sT2}, {extra}")
        a(f"v_mov_b32 v44, s{sNONCE}")
        a("s_mov_b64 exec, 1")
        a(f"buffer_store_dword v44, v{vZ}, {srd(S_WS)}, s{sT2} offen sc1")
        a("s_mov_b64 exec, -1")
        V.issued(('F', extra, sbase), 1)
    def poll(sbase, extra):
        if extra: a(f"s_add_u32 s{sOFFA}, s{sbase}, {extra}")
        else: a(f"s_mov_b32 s{sOFFA}, s{sbase}")
        call(a, "L_poll")
        V.issued(('P', extra, sbase), 1)
        V.n = V.n
        for k in list(V.mark): V.mark[k] = -1000
    def nonce_issue():
        a("s_memrealtime s[50:51]")
        a("s_waitcnt lgkmcnt(0)")
        a("s_or_b32 s50, s50, 1")
        a("v_mov_b32 v44, s50")
        a("v_mov_b32 v45, 0")
        a("s_mov_b64 exec, 1")
        a(f"global_atomic_cmpswap v46, v{vZ}, v[44:45], s[{sDBG}:{sDBG+1}] sc0 sc1")
        a("s_mov_b64 exec, -1")
        V.issued('NONCE', 1)
    def nonce_get():
        a(V.wait('NONCE'))
        a(f"v_readfirstlane_b32 s51, v46")
        a("s_nop 3")
        a("s_cmp_eq_u32 s51, 0")
        a(f"s_cselect_b32 s{sNONCE}, s50, s51")
    OA_BASE = lambda i: 96*KB + (i % 2) * 32*KB
    OB_BASE = lambda i: (96*KB + i * 32*KB) % (160*KB)

    tile_q1(0); tile_q1(1); tile_q1(2); kv(0); kv(1)
    stamp(a, 2)
    for q in range(11):
        w = [('Q1', q)] if q <= 9 else [('KV', 0)]
        a(V.wait(*w))
        a("s_barrier")
        if q >= 1 and q + 2 <= 9: tile_q1(q + 2)
        if q == 10: kv(2)
    for c in range(8):
        a(V.wait(('KV', c + 1)))
        a("s_barrier")
        if c == 1: nonce_issue()
        kv(c + 3)
        if c == 3: nonce_get()
        if c == 4: tile_q2(0); tile_q2(1)
        if c == 5: tile_q2(2); tile_q2(3)
    for q in range(11):
        if q <= 9: a(V.wait(('Q2', q)))
        a("s_barrier")
        if q == 0:
            flag_store(sF1, 0, sNQ)
            kv(11)
        if q >= 1 and q + 3 <= 9: tile_q2(q + 3)
    stamp(a, 3)
    def a2_step(c):
        a(V.wait(('KV', c + 9)))
        a("s_barrier")
        if c >= 1 and c != mA and c + 11 <= 16: kv(c + 11)
    for c in range(mA):
        a2_step(c)
        if c == mA - 1:
            poll(sF1, 0)
            for i in range(2):
                wo_tile(0, i, OA_BASE(i)); o_tile(0, i, OA_BASE(i))
    if mA == 0:
        raise NotImplementedError
    for i in range(8):
        a(V.wait(('WO', 0, i), ('O', 0, i)))
        a("s_barrier")
        if i == 0 and mA + 11 <= 16: kv(mA + 11)
        if i >= 1 and i + 1 <= 7:
            wo_tile(0, i + 1, OA_BASE(i + 1)); o_tile(0, i + 1, OA_BASE(i + 1))
    stamp(a, 4)
    pend_wo = [0, 1]
    for c in range(mA, 8):
        a2_step(c)
        if c == mA: wo_tile(1, 0, OB_BASE(0))
        if c == min(mA + 1, 7): wo_tile(1, 1, OB_BASE(1))
        if c == 6: wo_tile(1, 4, OB_BASE(4))
        if c == 7: wo_tile(1, 2, OB_BASE(2))
    a("s_barrier")
    flag_store(sF1, 16*KB, sNQ)
    wo_tile(1, 3, OB_BASE(3))
    stamp(a, 5)
    poll(sF1, 16*KB)
    stamp(a, 6)
    for i in range(5): o_tile(1, i, OB_BASE(i))
    for i in range(8):
        a(V.wait(('WO', 1, i), ('O', 1, i)))
        a("s_barrier")
        if i >= 1 and i + 4 <= 7:
            wo_tile(1, i + 4, OB_BASE(i + 4)); o_tile(1, i + 4, OB_BASE(i + 4))
    a("s_barrier")
    flag_store(sF3, 0, sG)
    poll(sF3, 0)
    stamp(a, 7)
    a("s_barrier")

def gen(P):
    a = Asm()
    kn = NAME + "_kernel"
    a.raw('.amdgcn_target "amdgcn-amd-amdhsa--gfx950"')
    a.raw(".text"); a.raw(f".globl {kn}"); a.raw(".p2align 8"); a.raw(f".type {kn},@function"); a.raw(f"{kn}:")
    prologue(a, 256)
    stamp_rt(a, 0); stamp(a, 1)
    a(f"s_cmp_eq_u32 s{sWAVE}, 3")
    a("s_cbranch_scc1 L_loader")
    mA = P.get('mA', 4)
    lane_setup_compute(a)
    a(f"s_mov_b32 s{sTHR}, {f2u(THR):#x}")
    a(f"s_mov_b32 s{sSCALE}, {f2u(SCALE):#x}")
    a(f"s_mov_b32 s{sUNIT}, 0")
    a(f"s_lshl_b32 s{sH}, s{sG}, 3")
    a(f"s_add_u32 s{sH}, s{sH}, s{sNQ}")
    call(a, "L_qphase")
    stamp(a, 2)
    call(a, "L_uprol")
    a(f"s_mov_b32 s{sSLOT}, 1")
    a(f"s_mov_b32 s{sDELTA}, {32*KB}")
    a(f"s_mov_b32 s{sN}, 8")
    call(a, "L_attn")
    stamp(a, 3)
    a(f"s_mov_b32 s{sOFFB}, s{sDELTA}")
    call(a, "L_uepi")
    a(f"s_mov_b32 s{sUNIT}, 1")
    a(f"s_add_u32 s{sH}, s{sH}, 4")
    call(a, "L_qphase")
    stamp(a, 4)
    a(f"s_mov_b32 s{sDELTA}, s{sOFFB}")
    call(a, "L_uprol")
    a(f"s_mov_b32 s{sN}, {mA}")
    call(a, "L_attn")
    a(f"s_mov_b32 s{sOFFB}, s{sDELTA}")
    for i in range(80): a(f"v_accvgpr_write_b32 a{aACC2+i}, 0")
    a(f"s_mov_b32 s{sOFFA}, {96*KB}")
    a(f"s_mov_b32 s{sLO}, {96*KB}")
    a(f"s_mov_b32 s{sHI}, {160*KB}")
    stamp(a, 5)
    call(a, "L_oproj")
    stamp(a, 6)
    a(f"s_mov_b32 s{sDELTA}, s{sOFFB}")
    if mA < 8:
        a(f"s_mov_b32 s{sN}, {8-mA}")
        call(a, "L_attn")
    call(a, "L_uepi")
    stamp(a, 7)
    a("s_barrier")
    a(f"s_mov_b32 s{sOFFA}, {96*KB}")
    a(f"s_mov_b32 s{sLO}, 0")
    a(f"s_mov_b32 s{sHI}, {160*KB}")
    call(a, "L_oproj")
    stamp(a, 8)
    final_exchange(a)
    a("s_waitcnt vmcnt(0)")
    stamp(a, 10); stamp_rt(a, 9)
    dump_stamps(a)
    a("s_endpgm")
    q_phase(a); unit_prologue(a); attn_loop(a); unit_epilogue(a); oproj(a)
    slow_path(a, 0); slow_path(a, 1)
    a.label("L_loader")
    loader_setup(a)
    loader_main(a, P)
    stamp(a, 10); stamp_rt(a, 9)
    dump_stamps(a)
    a("s_endpgm")
    loader_routines(a, P)
    a.label("L_END")
    a("s_endpgm")
    errs = check_hazards(a.lines)
    hdr = HDR + "; @launch grid=(256,1,1) block=(256,1,1) lds=163840\n"
    desc = f""".section .rodata,"a"
.p2align 6
.amdhsa_kernel {kn}
  .amdhsa_next_free_vgpr 512
  .amdhsa_next_free_sgpr 102
  .amdhsa_accum_offset 256
  .amdhsa_group_segment_fixed_size 0
  .amdhsa_kernarg_size 104
  .amdhsa_user_sgpr_count 2
  .amdhsa_user_sgpr_kernarg_segment_ptr 1
  .amdhsa_system_sgpr_workgroup_id_x 1
.end_amdhsa_kernel
"""
    return hdr + a.text() + desc, errs

if __name__ == "__main__":
    out = sys.argv[1] if len(sys.argv) > 1 else "v2.s"
    P = {}
    for arg in sys.argv[2:]:
        if arg == 'stamps': STAMPS = True
        elif '=' in arg:
            k, v = arg.split('='); P[k] = int(v)
    txt, errs = gen(P)
    open(out, "w").write(txt)
    print("written", out, len(txt), "bytes; hazards:", len(errs))
```

```python
import sys, struct
from asmlib import Asm, interleave, check_hazards

NAME = "concat_heads__mha_block_cached__mha_block_cached__near_ridge"
HDR = open('cdna_kernels/%s.s.ref' % NAME).read().split("; Override launch")[0]
KB = 1024
SCALE = 1.4426950408889634 / (128 ** 0.5)
def f2u(x): return struct.unpack('<I', struct.pack('<f', x))[0]
THR = 65536.0
WS_O = 0
WS_PART = 16 * 1024 * 1024
WS_FLAG = 40 * 1024 * 1024
WS_DBG = 48 * 1024 * 1024
NONCE_LDS = 156 * KB

S_K, S_V, S_WQ, S_X, S_WO, S_WS, S_OUT = 4, 8, 12, 16, 20, 24, 28
sWAVE, sBR, sG, sB, sNQ = 3, 32, 33, 34, 35
sT0, sT1, sT2, sT3 = 36, 37, 38, 39
sDBG = 62
sRET = 66
sF1, sF3 = 64, 65
sPEND = 68
sP = 69
sH = 70
sNONCE = 71
sUNIT, sCNT, sDELTA, sN, sTHR, sSCALE, sROT = 72, 73, 74, 75, 76, 77, 78
sOFFA, sOFFB, sSLOT = 79, 80, 81
sTM = 84
def srd(b): return f"s[{b}:{b+3}]"
STAMPS = False
NST = 12
def stamp(a, i):
    if not STAMPS: return
    a("s_memtime s[98:99]"); a("s_waitcnt lgkmcnt(0)"); a(f"s_mov_b32 s{sTM+i}, s98")
def stamp_rt(a, i):
    if not STAMPS: return
    a("s_memrealtime s[98:99]"); a("s_waitcnt lgkmcnt(0)"); a(f"s_mov_b32 s{sTM+i}, s98")
def dump_stamps(a):
    if not STAMPS: return
    a("s_lshl_b32 s96, s2, 2")
    a(f"s_add_u32 s96, s96, s{sWAVE}")
    a("s_lshl_b32 s96, s96, 6")
    a(f"s_add_u32 s96, s96, {WS_DBG}")
    a("v_mov_b32 v2, 0")
    for i in range(NST):
        a(f"v_mov_b32 v3, s{sTM+i}")
        a(f"buffer_store_dword v3, v2, {srd(S_WS)}, s96 offen offset:{4*i}")
        a("s_nop 1")
    for i, r in enumerate((100, 101)):
        a(f"v_mov_b32 v3, s{r}")
        a(f"buffer_store_dword v3, v2, {srd(S_WS)}, s96 offen offset:{4*(NST+i)}")
        a("s_nop 1")

TRACE = False
class Ev: n = 0
def ev(a, vreg, name=None):
    if not TRACE: return
    a("s_memtime s[98:99]"); a("s_waitcnt lgkmcnt(0)")
    a(f"v_writelane_b32 v{vreg}, s98, {Ev.n}")
    Ev.names.append(name); Ev.n += 1
Ev.names = []
def dump_trace(a, vreg, slot):
    if not TRACE: return
    a("s_lshl_b32 s96, s2, 2")
    a(f"s_add_u32 s96, s96, {slot}")
    a("s_lshl_b32 s96, s96, 8")
    a(f"s_add_u32 s96, s96, {WS_DBG + 1024*1024}")
    a("v_lshlrev_b32 v2, 2, v1")
    a(f"buffer_store_dword v{vreg}, v2, {srd(S_WS)}, s96 offen")
def prologue(a, nwg):
    a(f"s_cmp_ge_u32 s2, {nwg}")
    a("s_cbranch_scc1 L_END")
    a("s_load_dwordx16 s[40:55], s[0:1], 0")
    a("s_load_dwordx4 s[56:59], s[0:1], 64")
    a("s_load_dwordx4 s[60:63], s[0:1], 80")
    a("s_load_dwordx2 s[64:65], s[0:1], 96")
    a("v_lshrrev_b32 v1, 6, v0")
    a("s_and_b32 s36, s2, 7")
    a(f"v_readfirstlane_b32 s{sWAVE}, v1")
    a(f"s_lshr_b32 s{sBR}, s36, 2")
    a(f"s_and_b32 s{sG}, s36, 3")
    a("s_lshr_b32 s36, s2, 3")
    a(f"s_lshr_b32 s{sB}, s36, 2")
    a(f"s_and_b32 s{sNQ}, s36, 3")
    a("v_and_b32 v1, 63, v0")
    a("s_waitcnt lgkmcnt(0)")
    a(f"s_cmp_eq_u32 s{sBR}, 0")
    def mk(dst, ra, rb, nbytes):
        a(f"s_cselect_b32 s{dst}, s{ra}, s{rb}")
        a(f"s_cselect_b32 s{dst+1}, s{ra+1}, s{rb+1}")
        a(f"s_mov_b32 s{dst+2}, {nbytes}")
        a(f"s_mov_b32 s{dst+3}, 0x20000")
    mk(S_X, 40, 50, 8*96*640*2)
    mk(S_K, 42, 52, 8*32*512*128*2)
    mk(S_V, 44, 54, 8*32*512*128*2)
    mk(S_WQ, 46, 56, 640*4096*2)
    mk(S_WO, 48, 58, 4096*640*2)
    for dst, r, nb in ((S_OUT, 60, 8*96*1280*2), (S_WS, 64, 268435456)):
        a(f"s_mov_b32 s{dst}, s{r}")
        a(f"s_mov_b32 s{dst+1}, s{r+1}")
        a(f"s_mov_b32 s{dst+2}, {nb}")
        a(f"s_mov_b32 s{dst+3}, 0x20000")
    for base in (S_X, S_K, S_V, S_WQ, S_WO, S_OUT, S_WS):
        a(f"s_and_b32 s{base+1}, s{base+1}, 0xffff")
    a(f"s_lshl_b32 s{sF1}, s{sBR}, 2")
    a(f"s_add_u32 s{sF1}, s{sF1}, s{sG}")
    a(f"s_lshl_b32 s{sF1}, s{sF1}, 3")
    a(f"s_add_u32 s{sF1}, s{sF1}, s{sB}")
    a(f"s_lshl_b32 s{sF1}, s{sF1}, 7")
    a(f"s_add_u32 s{sF1}, s{sF1}, {WS_FLAG}")
    a(f"s_lshl_b32 s{sF3}, s{sBR}, 3")
    a(f"s_add_u32 s{sF3}, s{sF3}, s{sB}")
    a(f"s_lshl_b32 s{sF3}, s{sF3}, 2")
    a(f"s_add_u32 s{sF3}, s{sF3}, s{sNQ}")
    a(f"s_lshl_b32 s{sF3}, s{sF3}, 7")
    a(f"s_add_u32 s{sF3}, s{sF3}, {WS_FLAG + 32*KB}")

vAK, vAV, vAW, vAX = 16, 24, 28, 32
vL, vPS, vPSB = 36, 37, 38
vAO, vAB, vLIN, vZc, vFL = 40, 41, 42, 43, 44
S0, S1, NEG, P0, P1 = 48, 64, 80, 96, 104
VF = 112
OACC = 176
TMP = 240
aQF2, aQF, aKF = 128, 160, 192
aACC2, aRING = 0, 80
OF = 48
PF = 80
QA = [48, 112]
QB = 176

def call(a, lbl): a(f"s_call_b64 s[{sRET}:{sRET+1}], {lbl}")
def vr(b, n): return f"v[{b}:{b+n-1}]"
def ar(b, n): return f"a[{b}:{b+n-1}]"

def lane_setup_compute(a):
    a("v_lshrrev_b32 v2, 5, v1")
    a("v_and_b32 v3, 31, v1")
    a("v_and_b32 v4, 15, v1")
    a("v_xor_b32 v4, v4, v2")
    a("v_lshlrev_b32 v5, 8, v3")
    for s in range(8):
        a(f"v_xor_b32 v6, {2*s}, v4")
        a(f"v_lshl_add_u32 v{vAK+s}, v6, 4, v5")
    a("v_lshrrev_b32 v6, 2, v1")
    a("v_and_b32 v6, 3, v6")
    a("v_and_b32 v7, 3, v1")
    a("v_and_b32 v8, 1, v7")
    a("v_lshlrev_b32 v8, 1, v8")
    a("v_lshrrev_b32 v9, 1, v7")
    a("v_or_b32 v8, v8, v9")
    a("v_lshlrev_b32 v8, 3, v8")
    a("v_lshrrev_b32 v9, 4, v1")
    a("v_and_b32 v9, 1, v9")
    a("v_lshl_add_u32 v8, v9, 5, v8")
    a("v_lshl_add_u32 v10, v2, 2, v6")
    a("v_lshlrev_b32 v10, 8, v10")
    a("v_add_u32 v10, v10, v8")
    a("v_lshl_add_u32 v11, v2, 3, v6")
    a(f"s_movk_i32 s{sT0}, 320")
    a(f"v_mul_lo_u32 v{vAO}, v11, s{sT0}")
    a(f"v_add_u32 v{vAO}, v{vAO}, v8")
    a("v_lshlrev_b32 v11, 8, v11")
    a("v_add_u32 v11, v11, v8")
    for t in range(4):
        a(f"v_xor_b32 v12, {t}, v6")
        a(f"v_lshlrev_b32 v12, 6, v12")
        a(f"v_add_u32 v{vAV+t}, v10, v12")
        a(f"v_add_u32 v{vAW+t}, v11, v12")
        a(f"v_add_u32 v{vAV+t}, {16*KB}, v{vAV+t}")
        a(f"v_add_u32 v{vAW+t}, {64*KB}, v{vAW+t}")
    a(f"s_lshl_b32 s{sT0}, s{sWAVE}, 5")
    a(f"v_add_u32 v12, s{sT0}, v3")
    a("v_lshrrev_b32 v13, 1, v12")
    a("v_and_b32 v13, 7, v13")
    a("v_xor_b32 v13, v13, v2")
    a("v_lshlrev_b32 v14, 7, v12")
    for s in range(4):
        a(f"v_xor_b32 v15, {2*s}, v13")
        a(f"v_lshl_add_u32 v{vAX+s}, v15, 4, v14")
        a(f"v_add_u32 v{vAX+s}, {128*KB}, v{vAX+s}")
    a(f"s_lshl_b32 s{sT0}, s{sWAVE}, 12")
    a(f"s_add_u32 s{sT0}, s{sT0}, {20*KB}")
    a(f"v_lshlrev_b32 v{vLIN}, 4, v1")
    a(f"v_add_u32 v{vAB}, s{sT0}, v{vLIN}")
    a(f"v_mov_b32 v{vZc}, 0")

WSLOT = lambda s: 64*KB + (s % 4) * 16*KB
XSLOT = lambda m: 128*KB + (m % 2) * 12*KB

def q_phase(a):
    def fa(st, hd, ks, t): return 128*st + ((hd*2 + ks)*4 + t)*4
    def fb(st, ks): return QB + 16*st + 4*ks
    def reads(s):
        st = s & 1; L = []
        for ks in range(2):
            L.append(f"ds_read_b128 {vr(fb(st,ks),4)}, v{vAX + 2*(s&1) + ks} offset:{((s//2) % 2)*12*KB}")
        for hd in range(2):
            for ks in range(2):
                for t in range(4):
                    for jj in range(2):
                        L.append(f"ds_read_b64_tr_b16 {ar(fa(st,hd,ks,t)+2*jj,2)}, v{vAW+t} offset:{(s%4)*16*KB + hd*8*KB + (16*ks+4*jj)*256}")
        return L
    def mf(s):
        st = s & 1
        return [f"v_mfma_f32_32x32x16_bf16 {vr(QA[hd]+16*t,16)}, {ar(fa(st,hd,ks,t),4)}, {vr(fb(st,ks),4)}, {vr(QA[hd]+16*t,16)}"
                for hd in range(2) for ks in range(2) for t in range(4)]
    for hd in range(2):
        for i in range(64): a(f"v_mov_b32 v{QA[hd]+i}, 0")
    a("s_barrier")
    for ins in reads(0): a(ins)
    a("s_waitcnt lgkmcnt(0)")
    a(f"s_mov_b32 s{sCNT}, 0")
    a.label("L_q_loop")
    for s in range(1, 5):
        a("s_barrier")
        for ins in interleave(mf(s-1), reads(s), every=3): a(ins)
        if s == 4:
            a(f"s_add_u32 s{sCNT}, s{sCNT}, 1")
            a(f"s_cmp_lt_u32 s{sCNT}, 5")
        a("s_waitcnt lgkmcnt(0)")
    a("s_cbranch_scc1 L_q_loop")
    a("s_nop 7"); a("s_nop 3")
    for i in range(64): a(f"v_mov_b32 v{OACC+i}, 0")
    for hd in range(2):
        dst = aQF if hd == 0 else aQF2
        for t in range(4):
            for r in range(0, 16, 2):
                src = QA[hd] + 16*t + r
                tmp = TMP + (r % 8)
                a(f"v_mul_f32 v{tmp}, s{sSCALE}, v{src}")
                a(f"v_mul_f32 v{tmp+1}, s{sSCALE}, v{src+1}")
                a(f"v_cvt_pk_bf16_f32 v{tmp}, v{tmp}, v{tmp+1}")
                a(f"v_accvgpr_write_b32 a{dst + (2*t + r//8)*4 + (r%8)//2}, v{tmp}")

def sm_list(S, P):
    L = []
    for r in range(0, 16, 4):
        for e in range(4):
            L.append(f"v_exp_f32 v{TMP+r+e}, v{S+r+e}")
        if r == 0:
            L.append(f"v_add_f32 v{vPS}, v{TMP}, v{TMP+1}")
            L.append(f"v_add_f32 v{vPSB}, v{TMP+2}, v{TMP+3}")
        else:
            L.append(f"v_add_f32 v{vPS}, v{vPS}, v{TMP+r}")
            L.append(f"v_add_f32 v{vPSB}, v{vPSB}, v{TMP+r+2}")
            L.append(f"v_add_f32 v{vPS}, v{vPS}, v{TMP+r+1}")
            L.append(f"v_add_f32 v{vPSB}, v{vPSB}, v{TMP+r+3}")
        L.append(f"v_cvt_pk_bf16_f32 v{P+r//2}, v{TMP+r}, v{TMP+r+1}")
        L.append(f"v_cvt_pk_bf16_f32 v{P+r//2+1}, v{TMP+r+2}, v{TMP+r+3}")
    L.append(f"v_add_f32 v{vPS}, v{vPS}, v{vPSB}")
    return L
def qk_mfma(T, s, czero=False):
    S = S0 if T == 0 else S1
    c = ("0" if czero else vr(NEG, 16)) if s == 0 else vr(S, 16)
    return f"v_mfma_f32_32x32x16_bf16 {vr(S,16)}, {ar(aKF + (T*8+s)*4, 4)}, {ar(aQF+4*s,4)}, {c}"
def pv_mfma(T, m, t):
    P = P0 if T == 0 else P1
    return f"v_mfma_f32_32x32x16_bf16 {vr(OACC+16*t,16)}, {vr(VF + ((T*2+m)*4+t)*4, 4)}, {vr(P+4*m,4)}, {vr(OACC+16*t,16)}"
def k_read(T, s):
    return f"ds_read_b128 {ar(aKF+(T*8+s)*4,4)}, v{vAK+s} offset:{T*8192}"
def v_read(T, m, t, jj):
    return f"ds_read_b64_tr_b16 {vr(VF+((T*2+m)*4+t)*4+2*jj,2)}, v{vAV+t} offset:{(32*T+16*m+8*jj)*256}"
def rowmax(a, S):
    a(f"v_max3_f32 v2, v{S}, v{S+1}, v{S+2}")
    for r in range(3, 15, 2):
        a(f"v_max3_f32 v2, v2, v{S+r}, v{S+r+1}")
    a(f"v_max_f32 v2, v2, v{S+15}")
    a("v_mov_b32 v3, v2")
    a("s_nop 1")
    a("v_permlane32_swap_b32 v2, v3")
    a("v_max_f32 v2, v2, v3")
def slow_path(a, T):
    S = S0 if T == 0 else S1
    So = S1 if T == 0 else S0
    P = P0 if T == 0 else P1
    a.label(f"L_slow{T}")
    a("s_nop 15"); a("s_nop 7")
    rowmax(a, S)
    a("v_max_f32 v2, 0, v2")
    a("v_sub_f32 v3, 0, v2")
    a("v_exp_f32 v3, v3")
    a("s_nop 0")
    a(f"v_mul_f32 v{vL}, v{vL}, v3")
    for i in range(64): a(f"v_mul_f32 v{OACC+i}, v{OACC+i}, v3")
    for i in range(16): a(f"v_sub_f32 v{NEG+i}, v{NEG+i}, v2")
    for i in range(16): a(f"v_sub_f32 v{S+i}, v{S+i}, v2")
    for i in range(16): a(f"v_sub_f32 v{So+i}, v{So+i}, v2")
    for ins in sm_list(S, P): a(ins)
    a("s_nop 1")
    a(f"s_branch L_cont{T}")

def unit_prologue(a):
    a.label("L_uprol")
    a(f"s_cmp_eq_u32 s{sUNIT}, 0")
    a("s_cbranch_scc0 L_uprol_nok")
    for T in range(2):
        for s in range(8): a(k_read(T, s))
    a("s_waitcnt lgkmcnt(0)")
    a.label("L_uprol_nok")
    for s in range(8): a(qk_mfma(0, s, czero=True))
    for i in range(8): a(f"v_mov_b32 v{P1+i}, 0")
    for i in range(32): a(f"v_mov_b32 v{VF+32+i}, 0")
    a(f"v_mov_b32 v{vL}, 0")
    a("s_nop 7")
    rowmax(a, S0)
    for i in range(16): a(f"v_sub_f32 v{NEG+i}, 0, v2")
    for i in range(16): a(f"v_sub_f32 v{S0+i}, v{S0+i}, v2")
    a(f"s_setpc_b64 s[{sRET}:{sRET+1}]")

def attn_half(a, T, adv):
    O = 1 - T
    mf = []
    for i in range(8):
        mf.append(qk_mfma(O, i)); mf.append(pv_mfma(O, i // 4, i % 4))
    reads = [k_read(T, s) for s in range(8)] + [v_read(T, m, t, jj) for m in range(2) for t in range(4) for jj in range(2)]
    sm = sm_list(S0 if T == 0 else S1, P0 if T == 0 else P1)
    gaps = [[] for _ in range(16)]
    if adv:
        addr = [f"v_add_u32 v{vAK+s}, s{sDELTA}, v{vAK+s}" for s in range(8)] + [f"v_add_u32 v{vAV+t}, s{sDELTA}, v{vAV+t}" for t in range(4)]
        gaps[0] += addr[:6]; gaps[1] += addr[6:]; r0 = 2
    else:
        r0 = 0
    ri = 0
    for g in range(r0, 16):
        n = 2 if g < r0 + 12 else 0
        for _ in range(n):
            if ri < len(reads): gaps[g].append(reads[ri]); ri += 1
    assert ri == len(reads)
    s0 = 2; ng = 16 - s0; si = 0
    for g in range(s0, 16):
        tgt = (len(sm) * (g - s0 + 1) + ng - 1) // ng
        while si < tgt:
            gaps[g].append(sm[si]); si += 1
    for g in range(16):
        a(mf[g])
        for ins in gaps[g]: a(ins)
    a(f"v_cmp_nge_f32 vcc, s{sTHR}, v{vPS}")
    a("s_waitcnt lgkmcnt(0)")
    a(f"s_cbranch_vccnz L_slow{T}")
    a.label(f"L_cont{T}")
    a(f"v_add_f32 v{vL}, v{vL}, v{vPS}")

def attn_loop(a):
    a.label("L_attn")
    if STAMPS:
        a("s_memtime s[98:99]"); a("s_waitcnt lgkmcnt(0)"); a("s_mov_b32 s97, s98")
    a("s_barrier")
    if STAMPS:
        a("s_memtime s[98:99]"); a("s_waitcnt lgkmcnt(0)"); a("s_sub_u32 s97, s98, s97"); a(f"s_add_u32 s{sTM+11}, s{sTM+11}, s97")
    attn_half(a, 0, True)
    attn_half(a, 1, False)
    a(f"s_add_u32 s{sSLOT}, s{sSLOT}, 1")
    a(f"s_cmp_eq_u32 s{sSLOT}, 3")
    a(f"s_cselect_b32 s{sSLOT}, 0, s{sSLOT}")
    a(f"s_mov_b32 s{sT0}, {32*KB}")
    a(f"s_cmp_eq_u32 s{sSLOT}, 0")
    a(f"s_cselect_b32 s{sDELTA}, {(-64*KB) & 0xffffffff}, s{sT0}")
    a(f"s_sub_u32 s{sN}, s{sN}, 1")
    a(f"s_cmp_lg_u32 s{sN}, 0")
    a("s_cbranch_scc1 L_attn")
    a(f"s_setpc_b64 s[{sRET}:{sRET+1}]")

def flag_store_wave(a, sgrp, extra, sidx):
    a(f"s_lshl_b32 s{sT2}, s{sidx}, 2")
    a(f"s_lshl_b32 s{sT3}, s{sWAVE}, 4")
    a(f"s_add_u32 s{sT2}, s{sT2}, s{sT3}")
    a(f"s_add_u32 s{sT2}, s{sT2}, s{sgrp}")
    if extra: a(f"s_add_u32 s{sT2}, s{sT2}, {extra}")
    a(f"v_mov_b32 v{vFL}, s{sNONCE}")
    a("s_mov_b64 exec, 1")
    a(f"buffer_store_dword v{vFL}, v{vZc}, {srd(S_WS)}, s{sT2} offen sc1")
    a("s_mov_b64 exec, -1")

def poll_wave(a, sgrp, extra, tag, P):
    a(f"s_lshl_b32 s{sT3}, s{sWAVE}, 4")
    a(f"s_add_u32 s{sT3}, s{sT3}, s{sgrp}")
    if extra: a(f"s_add_u32 s{sT3}, s{sT3}, {extra}")
    a(f"s_mov_b32 s{sT1}, 0")
    a.label(f"L_pw_{tag}")
    a(f"buffer_load_dwordx4 {vr(vFL,4)}, v{vZc}, {srd(S_WS)}, s{sT3} offen sc1")
    a("s_waitcnt vmcnt(0)")
    for e in range(4): a(f"v_xor_b32 v{vFL+e}, s{sNONCE}, v{vFL+e}")
    a(f"v_or_b32 v{vFL}, v{vFL}, v{vFL+1}")
    a(f"v_or_b32 v{vFL+2}, v{vFL+2}, v{vFL+3}")
    a(f"v_or_b32 v{vFL}, v{vFL}, v{vFL+2}")
    a("s_nop 0")
    a(f"v_readfirstlane_b32 s{sT0}, v{vFL}")
    a(f"s_add_u32 s{sT1}, s{sT1}, 1")
    a(f"s_cmp_eq_u32 s{sT0}, 0")
    a(f"s_cbranch_scc1 L_pw_{tag}_done")
    a(f"s_cmp_ge_u32 s{sT1}, {P.get('spin', 200000)}")
    a(f"s_cbranch_scc1 L_pw_{tag}_done")
    a("s_sleep 1")
    a(f"s_branch L_pw_{tag}")
    a.label(f"L_pw_{tag}_done")

def unit_epilogue(a):
    a.label("L_uepi")
    for m in range(2):
        for t in range(4): a(pv_mfma(1, m, t))
    a(f"v_mov_b32 v2, v{vL}")
    a(f"v_mov_b32 v3, v{vL}")
    a(f"s_lshl_b32 s{sT0}, s{sBR}, 3")
    a(f"s_add_u32 s{sT0}, s{sT0}, s{sB}")
    a("v_permlane32_swap_b32 v2, v3")
    a(f"s_lshl_b32 s{sT0}, s{sT0}, 5")
    a("v_add_f32 v2, v2, v3")
    a(f"s_add_u32 s{sT0}, s{sT0}, s{sH}")
    a("v_rcp_f32 v2, v2")
    a(f"s_mul_i32 s{sT0}, s{sT0}, 3")
    a(f"s_add_u32 s{sT0}, s{sT0}, s{sWAVE}")
    a(f"s_lshl_b32 s{sT0}, s{sT0}, 13")
    a(f"s_add_u32 s{sT0}, s{sT0}, {WS_O}")
    a("s_nop 7")
    for t in range(4):
        for hf in range(2):
            base = OACC + 16*t + 8*hf
            s = 2*t + hf
            d = OF + 4*s
            for e in range(0, 8): a(f"v_mul_f32 v{base+e}, v{base+e}, v2")
            for e in range(0, 8, 2): a(f"v_cvt_pk_bf16_f32 v{d+e//2}, v{base+e}, v{base+e+1}")
            a(f"buffer_store_dwordx4 {vr(d,4)}, v{vLIN}, {srd(S_WS)}, s{sT0} offen offset:{(s%4)*1024} sc1")
            if s % 4 == 3: a(f"s_add_u32 s{sT0}, s{sT0}, 4096")
    a(f"s_setpc_b64 s[{sRET}:{sRET+1}]")

def ks_stream(a, steps, pre=None, hooks=None, nsets=4):
    def fa(i, t): return aRING + ((i % nsets)*5 + t)*4
    def rd(i):
        st = steps[i]; L = []
        if st['b'][0] == 'lds':
            L.append(f"ds_read_b128 {vr(TMP + (i % 4)*4, 4)}, v{st['b'][1]} offset:{st['b'][2]}")
        for t in range(5):
            for jj in range(2):
                L.append(f"ds_read_b64_tr_b16 {ar(fa(i,t)+2*jj,2)}, v{st['a'][0]} offset:{st['a'][1] + 4*jj*320 + 64*t}")
        return L
    def mf(i):
        st = steps[i]
        b = vr(TMP + (i % 4)*4, 4) if st['b'][0] == 'lds' else vr(st['b'][1], 4)
        return [f"v_mfma_f32_32x32x16_bf16 {ar(aACC2+16*t,16)}, {ar(fa(i,t),4)}, {b}, {ar(aACC2+16*t,16)}" for t in range(5)]
    n = len(steps)
    cnt = lambda i: len(rd(i))
    LA = 2
    for i in range(min(LA, n)):
        for ins in steps[i].get('pre', []): a(ins)
        for ins in rd(i): a(ins)
    for i in range(n):
        later = sum(cnt(j) for j in range(i+1, min(i+LA, n)))
        for ins in steps[i].get('wait', []): a(ins)
        a(f"s_waitcnt lgkmcnt({min(later,15)})")
        nxt = []
        if i + LA < n:
            nxt = list(steps[i+LA].get('pre', [])) + rd(i+LA)
        for ins in interleave(mf(i), nxt, every=3): a(ins)
        for ins in steps[i].get('post', []): a(ins)

def oa_tile(a):
    a.label("L_oatile")
    a(f"v_add_u32 v4, s{sOFFA}, v{vAO}")
    a(f"v_add_u32 v5, s{sOFFA}, v{vAB}")
    steps = [dict(a=(4, 16*ks*320), b=('lds', 5, ks*1024)) for ks in range(4)]
    ks_stream(a, steps)
    a(f"s_setpc_b64 s[{sRET}:{sRET+1}]")

def own_tiles(a):
    a.label("L_own")
    a(f"v_add_u32 v4, s{sOFFA}, v{vAO}")
    a(f"v_add_u32 v5, s{sOFFB}, v{vAO}")
    steps = [dict(a=(4 + (k // 4), 16*(k % 4)*320), b=('reg', OF + 4*k)) for k in range(8)]
    ks_stream(a, steps)
    a(f"s_setpc_b64 s[{sRET}:{sRET+1}]")

WB_POS = [80*KB, 100*KB, 120*KB, 140*KB, 0, 20*KB, 40*KB, 60*KB]

def tail(a, P):
    a("s_waitcnt vmcnt(0)")
    flag_store_wave(a, sF1, 16*KB, sNQ)
    stamp(a, 6)
    poll_wave(a, sF1, 16*KB, "f2", P)
    stamp(a, 7)
    a(f"s_lshl_b32 s{sT0}, s{sBR}, 3")
    a(f"s_add_u32 s{sT0}, s{sT0}, s{sB}")
    a(f"s_lshl_b32 s{sT0}, s{sT0}, 5")
    a(f"s_lshl_b32 s{sT1}, s{sG}, 3")
    a(f"s_add_u32 s{sT0}, s{sT0}, s{sT1}")
    a(f"s_add_u32 s{sT0}, s{sT0}, 4")
    for k in range(1, 4):
        a(f"s_add_u32 s{sT1}, s{sNQ}, {k}")
        a(f"s_and_b32 s{sT1}, s{sT1}, 3")
        a(f"s_add_u32 s{sT1}, s{sT1}, s{sT0}")
        a(f"s_mul_i32 s{sT1}, s{sT1}, 3")
        a(f"s_add_u32 s{sT1}, s{sT1}, s{sWAVE}")
        a(f"s_lshl_b32 s{sT1}, s{sT1}, 13")
        if WS_O: a(f"s_add_u32 s{sT1}, s{sT1}, {WS_O}")
        for s in range(8):
            if s == 4: a(f"s_add_u32 s{sT1}, s{sT1}, 4096")
            a(f"buffer_load_dwordx4 {vr(PF + (k-1)*32 + 4*s, 4)}, v{vLIN}, {srd(S_WS)}, s{sT1} offen offset:{(s%4)*1024}{' sc1' if P.get('osc1', 0) else ''}")
    a("s_barrier")
    for k in range(1, 4):
        a(f"s_waitcnt vmcnt({16 - 8*(k-1)})")
        for i in range(32): a(f"v_mov_b32 v{OF+i}, v{PF + (k-1)*32 + i}")
        a(f"s_mov_b32 s{sOFFA}, {WB_POS[2*k]}")
        a(f"s_mov_b32 s{sOFFB}, {WB_POS[2*k+1]}")
        call(a, "L_own")

def final_exchange(a, P):
    a("s_nop 7"); a("s_nop 7")
    a(f"s_lshl_b32 s{sT0}, s{sBR}, 3")
    a(f"s_add_u32 s{sT0}, s{sT0}, s{sB}")
    a(f"s_lshl_b32 s{sT0}, s{sT0}, 2")
    a(f"s_add_u32 s{sT0}, s{sT0}, s{sNQ}")
    a(f"s_mul_i32 s{sOFFA}, s{sT0}, {4*4*3*5*1024}")
    a(f"s_add_u32 s{sOFFA}, s{sOFFA}, {WS_PART}")
    a(f"s_mul_i32 s{sT2}, s{sWAVE}, {5*1024}")
    a(f"s_add_u32 s{sOFFA}, s{sOFFA}, s{sT2}")
    for dst in range(4):
        a(f"s_cmp_eq_u32 s{sG}, {dst}")
        a(f"s_cbranch_scc1 L_fx_skip{dst}")
        a(f"s_mul_i32 s{sT2}, s{sG}, {3*5*1024}")
        a(f"s_add_u32 s{sT2}, s{sT2}, {dst*4*3*5*1024}")
        a(f"s_add_u32 s{sT2}, s{sT2}, s{sOFFA}")
        for i in range(5):
            R = 5*dst + i
            if i == 4: a(f"s_add_u32 s{sT2}, s{sT2}, 4096")
            a(f"buffer_store_dwordx4 {ar(aACC2+4*R,4)}, v{vLIN}, {srd(S_WS)}, s{sT2} offen offset:{(i%4)*1024} sc1")
        a.label(f"L_fx_skip{dst}")
    for g in range(4):
        a(f"s_cmp_eq_u32 s{sG}, {g}")
        a(f"s_cbranch_scc0 L_fx_own{g}")
        for i in range(20): a(f"v_accvgpr_read_b32 v{48+i}, a{aACC2+20*g+i}")
        a.label(f"L_fx_own{g}")
    a("s_waitcnt vmcnt(0)")
    flag_store_wave(a, sF3, 0, sG)
    stamp(a, 8)
    poll_wave(a, sF3, 0, "f3", P)
    a(f"s_mul_i32 s{sT2}, s{sG}, {4*3*5*1024}")
    a(f"s_add_u32 s{sOFFA}, s{sOFFA}, s{sT2}")
    for k in range(1, 4):
        a(f"s_add_u32 s{sT2}, s{sG}, {k}")
        a(f"s_and_b32 s{sT2}, s{sT2}, 3")
        a(f"s_mul_i32 s{sT2}, s{sT2}, {3*5*1024}")
        a(f"s_add_u32 s{sT2}, s{sT2}, s{sOFFA}")
        for i in range(5):
            if i == 4: a(f"s_add_u32 s{sT2}, s{sT2}, 4096")
            d = 68 + (k-1)*20 + 4*i
            a(f"buffer_load_dwordx4 {vr(d,4)}, v{vLIN}, {srd(S_WS)}, s{sT2} offen offset:{(i%4)*1024}{' sc1' if P.get('osc1', 0) else ''}")
    a("v_and_b32 v5, 31, v1")
    a("v_lshrrev_b32 v6, 5, v1")
    a(f"s_mul_i32 s{sT0}, s{sB}, 96")
    a(f"s_lshl_b32 s{sT1}, s{sWAVE}, 5")
    a(f"s_add_u32 s{sT0}, s{sT0}, s{sT1}")
    a(f"v_add_u32 v5, s{sT0}, v5")
    a(f"s_movk_i32 s{sT1}, 2560")
    a(f"v_mul_lo_u32 v5, v5, s{sT1}")
    a("v_lshl_add_u32 v5, v6, 4, v5")
    a(f"s_mul_i32 s{sT0}, s{sBR}, 1280")
    a(f"s_mul_i32 s{sT1}, s{sNQ}, 320")
    a(f"s_add_u32 s{sT0}, s{sT0}, s{sT1}")
    a("s_waitcnt vmcnt(0)")
    for i in range(5):
        for e in range(4):
            d = 48 + i*4 + e
            a(f"v_add_f32 v{d}, v{d}, v{d+20}")
            a(f"v_add_f32 v{d+40}, v{d+40}, v{d+60}")
            a(f"v_add_f32 v{d}, v{d}, v{d+40}")
        d = 48 + i*4
        a(f"v_cvt_pk_bf16_f32 v{d}, v{d}, v{d+1}")
        a(f"v_cvt_pk_bf16_f32 v{d+1}, v{d+2}, v{d+3}")
        a(f"s_mul_i32 s{sT1}, s{sG}, 5")
        a(f"s_add_u32 s{sT1}, s{sT1}, {i}")
        a(f"s_lshr_b32 s{sT2}, s{sT1}, 1")
        a(f"s_lshl_b32 s{sT2}, s{sT2}, 5")
        a(f"s_and_b32 s{sT3}, s{sT1}, 1")
        a(f"s_lshl_b32 s{sT3}, s{sT3}, 3")
        a(f"s_add_u32 s{sT2}, s{sT2}, s{sT3}")
        a(f"s_add_u32 s{sT2}, s{sT2}, s{sT0}")
        a(f"buffer_store_dwordx2 {vr(d,2)}, v5, {srd(S_OUT)}, s{sT2} offen")

class VmQ:
    def __init__(self): self.n = 0; self.mark = {}
    def issued(self, tag, cnt):
        self.n += cnt; self.mark[tag] = self.n
    def wait(self, *tags):
        later = min(self.n - self.mark[t] for t in tags)
        return f"s_waitcnt vmcnt({min(later, 63)})"

vKo, vVo, vWq_, vXo, vWo_, vLin, vZ, vPI = 16, 20, 24, 28, 32, 37, 38, 39
vPOLL = 40
def loader_setup(a):
    a("v_lshrrev_b32 v2, 4, v1")
    a("v_and_b32 v3, 15, v1")
    for e in range(4):
        a(f"v_add_u32 v4, {4*e}, v2")
        a("v_xor_b32 v4, v4, v3")
        a("v_lshlrev_b32 v4, 4, v4")
        a(f"v_lshl_add_u32 v{vKo+e}, v2, 8, v4")
    a("v_lshlrev_b32 v4, 2, v2")
    a("v_xor_b32 v4, v4, v3")
    a("v_lshlrev_b32 v4, 4, v4")
    a(f"v_lshl_add_u32 v{vVo}, v2, 8, v4")
    a("v_lshlrev_b32 v5, 13, v2")
    a("v_add_u32 v5, v5, v4")
    for e in range(4): a(f"v_add_u32 v{vWq_+e}, {e*(32768-1024)}, v5")
    a("v_lshrrev_b32 v6, 3, v1")
    a("v_and_b32 v7, 7, v1")
    a(f"s_movk_i32 s{sT0}, 1280")
    a(f"v_mul_lo_u32 v6, v6, s{sT0}")
    for e in range(4):
        a(f"v_add_u32 v8, {4*(e&1)}, v2")
        a("v_xor_b32 v8, v8, v7")
        a("v_lshl_add_u32 v8, v8, 4, v6")
        a(f"v_add_u32 v{vXo+e}, {e*(10240-1024)}, v8")
    a(f"s_movk_i32 s{sT0}, 3277")
    for e in range(5):
        a(f"v_add_u32 v2, {64*e}, v1")
        a(f"v_mul_lo_u32 v3, v2, s{sT0}")
        a("v_lshrrev_b32 v3, 16, v3")
        a("v_mul_u32_u24 v4, 20, v3")
        a("v_sub_u32 v4, v2, v4")
        a("v_mul_u32_u24 v3, 1280, v3")
        a("v_lshl_add_u32 v3, v4, 4, v3")
        if e < 4: a(f"v_subrev_u32 v{vWo_+e}, {e*1024}, v3")
        else: a(f"v_mov_b32 v{vWo_+e}, v3")
    a(f"v_lshlrev_b32 v{vLin}, 4, v1")
    a(f"v_mov_b32 v{vZ}, 0")
    a(f"v_lshlrev_b32 v{vPI}, 2, v1")
    a("v_cmp_gt_u32 vcc, 12, v1")
    a("s_nop 1")
    a(f"v_cndmask_b32 v{vPI}, 0, v{vPI}, vcc")

def loader_routines(a, P):
    ret = f"s_setpc_b64 s[{sRET}:{sRET+1}]"
    pol = P.get('kvpol', " nt")
    wpol = " nt" if P.get('ntw', 1) else ""
    opol = " sc1" if P.get('osc1', 0) else ""
    wopol = " nt" if P.get('ntwo', 0) else ""
    a.label("L_ldk")
    for m in range(4):
        a(f"s_add_u32 m0, s{sOFFB}, {m*4096}")
        a(f"s_add_u32 s{sT0}, s{sOFFA}, {m*4096}")
        for e in range(4): a(f"buffer_load_dwordx4 v{vKo+e}, {srd(S_K)}, s{sT0} offen offset:{e*1024}{pol} lds")
    a(ret)
    a.label("L_ldv")
    for m in range(4):
        a(f"s_add_u32 m0, s{sOFFB}, {m*4096}")
        a(f"s_add_u32 s{sT0}, s{sOFFA}, {m*4096}")
        for e in range(4): a(f"buffer_load_dwordx4 v{vVo}, {srd(S_V)}, s{sT0} offen offset:{e*1024}{pol} lds")
    a(ret)
    a.label("L_ldwq")
    for hd in range(2):
        for m in range(2):
            a(f"s_add_u32 m0, s{sOFFB}, {hd*8192 + m*4096}")
            a(f"s_add_u32 s{sT0}, s{sOFFA}, {hd*1024 + m*131072}")
            for e in range(4): a(f"buffer_load_dwordx4 v{vWq_+e}, {srd(S_WQ)}, s{sT0} offen offset:{e*1024}{wpol} lds")
    a(ret)
    a.label("L_ldx")
    for m in range(3):
        a(f"s_add_u32 m0, s{sOFFB}, {m*4096}")
        a(f"s_add_u32 s{sT0}, s{sOFFA}, {m*40960}")
        for e in range(4): a(f"buffer_load_dwordx4 v{vXo+e}, {srd(S_X)}, s{sT0} offen offset:{e*1024}{wpol} lds")
    a(ret)
    a.label("L_ldwo")
    for m in range(4):
        a(f"s_add_u32 m0, s{sOFFB}, {m*5*1024}")
        a(f"s_add_u32 s{sT0}, s{sOFFA}, {m*16*1280}")
        for e in range(4): a(f"buffer_load_dwordx4 v{vWo_+e}, {srd(S_WO)}, s{sT0} offen offset:{e*1024}{wopol} lds")
        a(f"s_add_u32 m0, s{sOFFB}, {m*5*1024 + 4096}")
        a("s_nop 0")
        a(f"buffer_load_dwordx4 v{vWo_+4}, {srd(S_WO)}, s{sT0} offen{wopol} lds")
    a(ret)
    a.label("L_ldo")
    for j in range(3):
        a(f"s_add_u32 m0, s{sOFFB}, {j*4096}")
        a(f"s_add_u32 s{sT0}, s{sOFFA}, {j*8192}")
        for e in range(4): a(f"buffer_load_dwordx4 v{vLin}, {srd(S_WS)}, s{sT0} offen offset:{e*1024}{opol} lds")
    a(ret)
    a.label("L_poll")
    a(f"s_mov_b32 s{sT1}, 0")
    a.label("L_poll_loop")
    a(f"buffer_load_dword v{vPOLL}, v{vPI}, {srd(S_WS)}, s{sOFFA} offen sc1")
    a("s_waitcnt vmcnt(0)")
    a(f"v_cmp_ne_u32 vcc, s{sNONCE}, v{vPOLL}")
    a(f"s_add_u32 s{sT1}, s{sT1}, 1")
    a("s_cbranch_vccz L_poll_done")
    a(f"s_cmp_ge_u32 s{sT1}, {P.get('spin', 200000)}")
    a("s_cbranch_scc1 L_poll_done")
    a("s_sleep 1")
    a("s_branch L_poll_loop")
    a.label("L_poll_done")
    a(ret)


def loader_main(a, P):
    V = VmQ()
    ev(a, 60, 'start')
    sCH, sXB, sU0, sU1, sH1, sWOB, sOB = 40, 41, 42, 43, 44, 45, 46
    a(f"s_lshl_b32 s{sH1}, s{sG}, 3")
    a(f"s_add_u32 s{sH1}, s{sH1}, s{sNQ}")
    a(f"s_lshl_b32 s{sT2}, s{sB}, 5")
    a(f"s_add_u32 s{sU0}, s{sT2}, s{sH1}")
    a(f"s_lshl_b32 s{sU0}, s{sU0}, 17")
    a(f"s_add_u32 s{sU1}, s{sU0}, {4 << 17}")
    a(f"s_mul_i32 s{sXB}, s{sB}, {96*1280}")
    a(f"s_mul_i32 s{sT2}, s{sNQ}, 5")
    a(f"s_lshr_b32 s{sT2}, s{sT2}, 1")
    a(f"s_add_u32 s{sROT}, s{sT2}, s{sB}")
    a(f"s_cmp_ge_u32 s{sROT}, 10")
    a(f"s_cselect_b32 s{sT2}, 10, 0")
    a(f"s_sub_u32 s{sROT}, s{sROT}, s{sT2}")
    a(f"s_mul_i32 s{sWOB}, s{sG}, {8*128*1280}")
    a(f"s_mul_i32 s{sT1}, s{sNQ}, 320")
    a(f"s_add_u32 s{sWOB}, s{sWOB}, s{sT1}")
    a(f"s_lshl_b32 s{sOB}, s{sBR}, 3")
    a(f"s_add_u32 s{sOB}, s{sOB}, s{sB}")
    a(f"s_lshl_b32 s{sOB}, s{sOB}, 5")
    a(f"s_lshl_b32 s{sT1}, s{sG}, 3")
    a(f"s_add_u32 s{sOB}, s{sOB}, s{sT1}")
    a(f"s_mul_i32 s{sOB}, s{sOB}, {3*8*1024}")
    if WS_O: a(f"s_add_u32 s{sOB}, s{sOB}, {WS_O}")

    def w_tile(t):
        a(f"s_add_u32 s{sCH}, s{sROT}, {t // 2}")
        a(f"s_cmp_ge_u32 s{sCH}, 10")
        a(f"s_cselect_b32 s{sT2}, 10, 0")
        a(f"s_sub_u32 s{sCH}, s{sCH}, s{sT2}")
        a(f"s_lshl_b32 s{sOFFA}, s{sCH}, 19")
        a(f"s_lshl_b32 s{sT2}, s{sH1}, 8")
        a(f"s_add_u32 s{sOFFA}, s{sOFFA}, s{sT2}")
        if t & 1: a(f"s_add_u32 s{sOFFA}, s{sOFFA}, {32*8192}")
        a(f"s_mov_b32 s{sOFFB}, {WSLOT(t)}")
        call(a, "L_ldwq")
        V.issued(('W', t), 16)
    def x_tile(m):
        a(f"s_add_u32 s{sCH}, s{sROT}, {m}")
        a(f"s_cmp_ge_u32 s{sCH}, 10")
        a(f"s_cselect_b32 s{sT2}, 10, 0")
        a(f"s_sub_u32 s{sCH}, s{sCH}, s{sT2}")
        a(f"s_lshl_b32 s{sOFFA}, s{sCH}, 7")
        a(f"s_add_u32 s{sOFFA}, s{sOFFA}, s{sXB}")
        a(f"s_mov_b32 s{sOFFB}, {XSLOT(m)}")
        call(a, "L_ldx")
        V.issued(('X', m), 12)
    def kv(n):
        cnt = 0; base = (n % 3) * 32*KB
        if n <= 15:
            u, c = (sU0, n) if n <= 7 else (sU1, n - 8)
            a(f"s_add_u32 s{sOFFA}, s{u}, {c*16384}")
            a(f"s_mov_b32 s{sOFFB}, {base}")
            call(a, "L_ldk"); cnt += 16
        if n >= 1:
            u, c = (sU0, n - 1) if n <= 8 else (sU1, n - 9)
            a(f"s_add_u32 s{sOFFA}, s{u}, {c*16384}")
            a(f"s_mov_b32 s{sOFFB}, {base + 16*KB}")
            call(a, "L_ldv"); cnt += 16
        V.issued(('KV', n), cnt)
    def o_rot(i):
        a(f"s_lshl_b32 s{sCH}, s{sNQ}, 1")
        a(f"s_add_u32 s{sCH}, s{sCH}, {i}")
        a(f"s_and_b32 s{sCH}, s{sCH}, 7")
    def wo_tile(ph, i, base):
        o_rot(i)
        a(f"s_mul_i32 s{sOFFA}, s{sCH}, {64*1280}")
        a(f"s_add_u32 s{sOFFA}, s{sOFFA}, s{sWOB}")
        if ph == 1: a(f"s_add_u32 s{sOFFA}, s{sOFFA}, {4*128*1280}")
        a(f"s_mov_b32 s{sOFFB}, {base}")
        call(a, "L_ldwo")
        V.issued(('WO', ph, i), 20)
    def o_tile(ph, i, base):
        o_rot(i)
        a(f"s_lshr_b32 s{sT2}, s{sCH}, 1")
        a(f"s_mul_i32 s{sOFFA}, s{sT2}, {3*8*1024}")
        a(f"s_and_b32 s{sT2}, s{sCH}, 1")
        a(f"s_lshl_b32 s{sT2}, s{sT2}, 12")
        a(f"s_add_u32 s{sOFFA}, s{sOFFA}, s{sT2}")
        a(f"s_add_u32 s{sOFFA}, s{sOFFA}, s{sOB}")
        if ph == 1: a(f"s_add_u32 s{sOFFA}, s{sOFFA}, {4*3*8*1024}")
        a(f"s_mov_b32 s{sOFFB}, {base + 20*KB}")
        call(a, "L_ldo")
        V.issued(('O', ph, i), 12)
    def poll(sbase, extra):
        if extra: a(f"s_add_u32 s{sOFFA}, s{sbase}, {extra}")
        else: a(f"s_mov_b32 s{sOFFA}, s{sbase}")
        call(a, "L_poll")
        V.issued(('P', extra), 1)
        for k in list(V.mark): V.mark[k] = -1000
    def nonce_make():
        a("s_cmp_eq_u32 s2, 0")
        a("s_cbranch_scc0 L_nonce_skip")
        a("s_memrealtime s[50:51]")
        a("s_waitcnt lgkmcnt(0)")
        a("s_or_b32 s50, s50, 1")
        a("v_mov_b32 v44, s50")
        a("s_mov_b64 exec, 1")
        a(f"global_store_dword v{vZ}, v44, s[{sDBG}:{sDBG+1}] sc0 sc1")
        a("s_mov_b64 exec, -1")
        a("s_waitcnt vmcnt(0)")
        a.label("L_nonce_skip")
    def nonce_issue():
        a(f"global_load_dword v46, v{vZ}, s[{sDBG}:{sDBG+1}] sc0 sc1")
        V.issued('NONCE', 1)
    def nonce_get():
        a(V.wait('NONCE'))
        a(f"s_mov_b32 s{sT1}, 0")
        a.label("L_nonce_chk")
        a(f"v_readfirstlane_b32 s{sNONCE}, v46")
        a(f"s_add_u32 s{sT1}, s{sT1}, 1")
        a(f"s_cmp_lg_u32 s{sNONCE}, 0")
        a("s_cbranch_scc1 L_nonce_ok")
        a(f"s_cmp_ge_u32 s{sT1}, {P.get('spin', 200000)}")
        a("s_cbranch_scc1 L_nonce_ok")
        a(f"global_load_dword v46, v{vZ}, s[{sDBG}:{sDBG+1}] sc0 sc1")
        a("s_waitcnt vmcnt(0)")
        a("s_branch L_nonce_chk")
        a.label("L_nonce_ok")
        a(f"v_mov_b32 v44, s{sNONCE}")
        a(f"v_mov_b32 v45, {NONCE_LDS}")
        a("ds_write_b32 v45, v44")
        a("s_waitcnt lgkmcnt(0)")
    def wo_touch():
        a(f"s_lshl_b32 s{sT1}, s{sB}, 2")
        a(f"s_add_u32 s{sT1}, s{sT1}, s{sNQ}")
        a(f"s_mul_i32 s{sT1}, s{sT1}, 40960")
        a(f"s_mul_i32 s{sT2}, s{sG}, {8*128*1280}")
        a(f"s_add_u32 s{sT1}, s{sT1}, s{sT2}")
        a(f"v_lshlrev_b32 v47, 7, v1")
        for i in range(5):
            a(f"buffer_load_dword v{48+i}, v47, {srd(S_WO)}, s{sT1} offen{' nt' if P.get('ntwo', 0) else ''}")
            a(f"s_add_u32 s{sT1}, s{sT1}, 8192")
        V.issued('TOUCH', 5)
    def wo_touch_thin(k):
        a(f"s_lshl_b32 s{sT1}, s{sB}, 2")
        a(f"s_add_u32 s{sT1}, s{sT1}, s{sNQ}")
        a(f"s_mul_i32 s{sT1}, s{sT1}, 20480")
        a(f"s_mul_i32 s{sT2}, s{sG}, {8*128*1280}")
        a(f"s_add_u32 s{sT1}, s{sT1}, s{sT2}")
        a(f"s_add_u32 s{sT1}, s{sT1}, {(k // 4)*655360 + (k % 4)*5120}")
        a(f"v_lshlrev_b32 v47, 7, v1")
        a("s_mov_b32 exec_hi, 0xff")
        a(f"buffer_load_dword v48, v47, {srd(S_WO)}, s{sT1} offen")
        a("s_mov_b64 exec, -1")
        V.issued(('TT', k), 1)
    OA_BASE = lambda j: 96*KB + (j % 2) * 32*KB

    kvq = P.get('kvq', [16, 17])
    if P.get('ctouch', 1):
        nl = P.get('clines', 5)
        a("s_getpc_b64 s[52:53]")
        a.label("L_pc_ref")
        a(f"s_sub_u32 s52, s52, L_pc_ref-{NAME}_kernel")
        a("s_subb_u32 s53, s53, 0")
        a(f"s_lshl_b32 s{sT1}, s{sB}, 2")
        a(f"s_add_u32 s{sT1}, s{sT1}, s{sNQ}")
        a(f"s_mul_i32 s{sT1}, s{sT1}, {nl*128}")
        a("v_lshlrev_b32 v47, 7, v1")
        a(f"v_add_u32 v47, s{sT1}, v47")
        a(f"s_mov_b64 exec, {(1 << nl) - 1}")
        a("global_load_dword v53, v47, s[52:53]")
        a("s_mov_b64 exec, -1")
        V.issued('CT', 1)
    nonce_make()
    x_tile(0); w_tile(0); w_tile(1)
    stamp(a, 2)
    first = {0: [('w', 2), ('x', 1), ('w', 3)]}
    for b in range(21):
        w = [('W', b), ('X', b // 2)] if b <= 19 else [('KV', 0)]
        a(V.wait(*w))
        a("s_barrier"); ev(a, 60, "bar")
        if b == 0:
            w_tile(2); x_tile(1); w_tile(3)
        if b >= 2 and b % 2 == 0 and b // 2 + 1 <= 9: x_tile(b // 2 + 1)
        if b >= 1 and b + 3 <= 19: w_tile(b + 3)
        if b == kvq[0]: kv(0)
        if b == kvq[1]: kv(1)
        if b == P.get('touchb', -1) and P.get('touch', 1): wo_touch()
        if b == 20: kv(2)
    stamp(a, 3)
    for c in range(8):
        a(V.wait(('KV', c + 1)));
        a("s_barrier"); ev(a, 60, "bar")
        if c == 1: nonce_issue()
        if c == P.get('touchc', -1) and P.get('touch', 1): wo_touch()
        if c == 5:
            wo_tile(0, 0, 96*KB); wo_tile(0, 1, 116*KB)
        if P.get('thin', 1): wo_touch_thin(c)
        kv(c + 3)
        if c == 3: nonce_get()
    a(V.wait(('WO', 0, 0), ('WO', 0, 1)))
    a("s_barrier"); ev(a, 60, "bar")
    kv(11)
    stamp(a, 4)
    for p in range(8):
        w = [('KV', p + 9)]
        if p >= 2: w += [('WO', 0, p), ('O', 0, p)]
        a(V.wait(*w))
        a("s_barrier"); ev(a, 60, "bar")
        if p == 0:
            wo_tile(0, 2, OA_BASE(0))
            poll(sF1, 0)
            o_tile(0, 2, OA_BASE(0))
        if p == 1:
            wo_tile(0, 3, OA_BASE(1)); o_tile(0, 3, OA_BASE(1))
        if 3 <= p <= 6:
            wo_tile(0, p + 1, OA_BASE(p - 1)); o_tile(0, p + 1, OA_BASE(p - 1))
        if p == 7:
            wo_tile(1, 0, WB_POS[0]); wo_tile(1, 1, WB_POS[1]); wo_tile(1, 4, WB_POS[4])
        if p >= 1 and p + 11 <= 16: kv(p + 11)
    stamp(a, 5)
    a(V.wait(('WO', 1, 0), ('WO', 1, 1)))
    a("s_barrier"); ev(a, 60, "bar")
    for i in (2, 3, 5, 6, 7): wo_tile(1, i, WB_POS[i])
    a("s_waitcnt vmcnt(0)")
    stamp(a, 6)
    a("s_barrier"); ev(a, 60, "bar")

def gen(P):
    a = Asm()
    kn = NAME + "_kernel"
    a.raw('.amdgcn_target "amdgcn-amd-amdhsa--gfx950"')
    a.raw(".text"); a.raw(f".globl {kn}"); a.raw(".p2align 8"); a.raw(f".type {kn},@function"); a.raw(f"{kn}:")
    prologue(a, 256)
    stamp_rt(a, 0); stamp(a, 1)
    if STAMPS:
        a(f"s_mov_b32 s{sTM+11}, 0"); a("s_mov_b32 s100, 0"); a("s_mov_b32 s101, 0")
    a(f"s_cmp_eq_u32 s{sWAVE}, 3")
    a("s_cbranch_scc1 L_loader")
    lane_setup_compute(a)
    a(f"s_mov_b32 s{sTHR}, {f2u(THR):#x}")
    a(f"s_mov_b32 s{sSCALE}, {f2u(SCALE):#x}")
    a(f"s_mov_b32 s{sUNIT}, 0")
    a(f"s_lshl_b32 s{sH}, s{sG}, 3")
    a(f"s_add_u32 s{sH}, s{sH}, s{sNQ}")
    q_phase(a)
    stamp(a, 2)
    call(a, "L_uprol")
    a(f"s_mov_b32 s{sSLOT}, 1")
    a(f"s_mov_b32 s{sDELTA}, {32*KB}")
    a(f"s_mov_b32 s{sN}, 8")
    call(a, "L_attn")
    stamp(a, 3)
    a(f"s_mov_b32 s{sPEND}, s{sDELTA}")
    for i in range(32): a(f"v_accvgpr_mov_b32 a{aQF+i}, a{aQF2+i}")
    a(f"v_mov_b32 v4, {NONCE_LDS}")
    a("ds_read_b32 v5, v4")
    call(a, "L_uepi")
    a("s_waitcnt lgkmcnt(0)")
    a(f"v_readfirstlane_b32 s{sNONCE}, v5")
    for i in range(80): a(f"v_accvgpr_write_b32 a{aACC2+i}, 0")
    a("s_barrier")
    a(f"s_mov_b32 s{sOFFA}, {96*KB}")
    a(f"s_mov_b32 s{sOFFB}, {116*KB}")
    call(a, "L_own")
    a(f"s_mov_b32 s{sUNIT}, 1")
    a(f"s_add_u32 s{sH}, s{sH}, 4")
    for i in range(64): a(f"v_mov_b32 v{OACC+i}, 0")
    stamp(a, 4)
    call(a, "L_uprol")
    a("s_waitcnt vmcnt(0)")
    flag_store_wave(a, sF1, 0, sNQ)
    a(f"s_mov_b32 s{sDELTA}, s{sPEND}")
    a(f"s_mov_b32 s{sP}, 0")
    a.label("L_r2")
    a(f"s_mov_b32 s{sN}, 1")
    call(a, "L_attn")
    a(f"s_mov_b32 s{sPEND}, s{sDELTA}")
    a(f"s_cmp_lt_u32 s{sP}, 2")
    a("s_cbranch_scc1 L_r2_next")
    a(f"s_and_b32 s{sOFFA}, s{sP}, 1")
    a(f"s_lshl_b32 s{sOFFA}, s{sOFFA}, 15")
    a(f"s_add_u32 s{sOFFA}, s{sOFFA}, {96*KB}")
    call(a, "L_oatile")
    a.label("L_r2_next")
    a(f"s_mov_b32 s{sDELTA}, s{sPEND}")
    a(f"s_add_u32 s{sP}, s{sP}, 1")
    a(f"s_cmp_lt_u32 s{sP}, 8")
    a("s_cbranch_scc1 L_r2")
    a.label("L_r2_done")
    stamp(a, 5)
    a("s_barrier")
    call(a, "L_uepi")
    a(f"s_mov_b32 s{sOFFA}, {WB_POS[0]}")
    a(f"s_mov_b32 s{sOFFB}, {WB_POS[1]}")
    call(a, "L_own")
    tail(a, P)
    final_exchange(a, P)
    a("s_waitcnt vmcnt(0)")
    stamp(a, 10); stamp_rt(a, 9)
    dump_stamps(a)
    a("s_endpgm")
    unit_prologue(a); attn_loop(a); unit_epilogue(a); oa_tile(a); own_tiles(a)
    slow_path(a, 0); slow_path(a, 1)
    a.label("L_loader")
    loader_setup(a)
    loader_main(a, P)
    dump_trace(a, 60, 3)
    stamp(a, 10); stamp_rt(a, 9)
    dump_stamps(a)
    a("s_endpgm")
    loader_routines(a, P)
    a.label("L_END")
    a("s_endpgm")
    errs = check_hazards(a.lines)
    hdr = HDR + "; @launch grid=(256,1,1) block=(256,1,1) lds=163840\n"
    desc = f""".section .rodata,"a"
.p2align 6
.amdhsa_kernel {kn}
  .amdhsa_next_free_vgpr 512
  .amdhsa_next_free_sgpr 102
  .amdhsa_accum_offset 256
  .amdhsa_group_segment_fixed_size 0
  .amdhsa_kernarg_size 104
  .amdhsa_user_sgpr_count 2
  .amdhsa_user_sgpr_kernarg_segment_ptr 1
  .amdhsa_system_sgpr_workgroup_id_x 1
.end_amdhsa_kernel
"""
    return hdr + a.text() + desc, errs

if __name__ == "__main__":
    out = sys.argv[1] if len(sys.argv) > 1 else "v3.s"
    P = {}
    for arg in sys.argv[2:]:
        if arg == 'stamps': STAMPS = True
        elif arg == 'trace': TRACE = True
        elif '=' in arg:
            k, v = arg.split('=', 1); P[k] = eval(v)
    txt, errs = gen(P)
    open(out, "w").write(txt)
    print("written", out, len(txt), "bytes; hazards:", len(errs))
```

```python
import sys, struct
from asmlib import Asm, interleave, check_hazards

NAME = "concat_heads__mha_block_cached__mha_block_cached__near_ridge"
HDR = open('cdna_kernels/%s.s.ref' % NAME).read().split("; Override launch")[0]
KB = 1024
SCALE = 1.4426950408889634 / (128 ** 0.5)
def f2u(x): return struct.unpack('<I', struct.pack('<f', x))[0]
THR = 65536.0
WS_O = 0
WS_PART = 16 * 1024 * 1024
WS_FLAG = 40 * 1024 * 1024
WS_DBG = 48 * 1024 * 1024
NONCE_LDS = 156 * KB

S_K, S_V, S_WQ, S_X, S_WO, S_WS, S_OUT = 4, 8, 12, 16, 20, 24, 28
sWAVE, sBR, sG, sB, sNQ = 3, 32, 33, 34, 35
sT0, sT1, sT2, sT3 = 36, 37, 38, 39
sDBG = 62
sRET = 66
sF1, sF3 = 64, 65
sPEND = 68
sP = 69
sH = 70
sNONCE = 71
sUNIT, sCNT, sDELTA, sN, sTHR, sSCALE, sROT = 72, 73, 74, 75, 76, 77, 78
sOFFA, sOFFB, sSLOT = 79, 80, 81
sTM = 84
def srd(b): return f"s[{b}:{b+3}]"
STAMPS = False
NST = 12
def stamp(a, i):
    if not STAMPS: return
    a("s_memtime s[98:99]"); a("s_waitcnt lgkmcnt(0)"); a(f"s_mov_b32 s{sTM+i}, s98")
def stamp_rt(a, i):
    if not STAMPS: return
    a("s_memrealtime s[98:99]"); a("s_waitcnt lgkmcnt(0)"); a(f"s_mov_b32 s{sTM+i}, s98")
def dump_stamps(a):
    if not STAMPS: return
    a("s_lshl_b32 s96, s2, 2")
    a(f"s_add_u32 s96, s96, s{sWAVE}")
    a("s_lshl_b32 s96, s96, 6")
    a(f"s_add_u32 s96, s96, {WS_DBG}")
    a("v_mov_b32 v2, 0")
    for i in range(NST):
        a(f"v_mov_b32 v3, s{sTM+i}")
        a(f"buffer_store_dword v3, v2, {srd(S_WS)}, s96 offen offset:{4*i}")
        a("s_nop 1")
    for i, r in enumerate((100, 101)):
        a(f"v_mov_b32 v3, s{r}")
        a(f"buffer_store_dword v3, v2, {srd(S_WS)}, s96 offen offset:{4*(NST+i)}")
        a("s_nop 1")

TRACE = False
class Ev: n = 0
def ev(a, vreg, name=None):
    if not TRACE: return
    a("s_memtime s[98:99]"); a("s_waitcnt lgkmcnt(0)")
    a(f"v_writelane_b32 v{vreg}, s98, {Ev.n}")
    Ev.names.append(name); Ev.n += 1
Ev.names = []
def dump_trace(a, vreg, slot):
    if not TRACE: return
    a("s_lshl_b32 s96, s2, 2")
    a(f"s_add_u32 s96, s96, {slot}")
    a("s_lshl_b32 s96, s96, 8")
    a(f"s_add_u32 s96, s96, {WS_DBG + 1024*1024}")
    a("v_lshlrev_b32 v2, 2, v1")
    a(f"buffer_store_dword v{vreg}, v2, {srd(S_WS)}, s96 offen")
def prologue(a, nwg):
    a(f"s_cmp_ge_u32 s2, {nwg}")
    a("s_cbranch_scc1 L_END")
    a("s_load_dwordx16 s[40:55], s[0:1], 0")
    a("s_load_dwordx4 s[56:59], s[0:1], 64")
    a("s_load_dwordx4 s[60:63], s[0:1], 80")
    a("s_load_dwordx2 s[64:65], s[0:1], 96")
    a("v_lshrrev_b32 v1, 6, v0")
    a("s_and_b32 s36, s2, 7")
    a(f"v_readfirstlane_b32 s{sWAVE}, v1")
    a(f"s_lshr_b32 s{sBR}, s36, 2")
    a(f"s_and_b32 s{sG}, s36, 3")
    a("s_lshr_b32 s36, s2, 3")
    a(f"s_lshr_b32 s{sB}, s36, 2")
    a(f"s_and_b32 s{sNQ}, s36, 3")
    a("v_and_b32 v1, 63, v0")
    a("s_waitcnt lgkmcnt(0)")
    a(f"s_cmp_eq_u32 s{sBR}, 0")
    def mk(dst, ra, rb, nbytes):
        a(f"s_cselect_b32 s{dst}, s{ra}, s{rb}")
        a(f"s_cselect_b32 s{dst+1}, s{ra+1}, s{rb+1}")
        a(f"s_mov_b32 s{dst+2}, {nbytes}")
        a(f"s_mov_b32 s{dst+3}, 0x20000")
    mk(S_X, 40, 50, 8*96*640*2)
    mk(S_K, 42, 52, 8*32*512*128*2)
    mk(S_V, 44, 54, 8*32*512*128*2)
    mk(S_WQ, 46, 56, 640*4096*2)
    mk(S_WO, 48, 58, 4096*640*2)
    for dst, r, nb in ((S_OUT, 60, 8*96*1280*2), (S_WS, 64, 268435456)):
        a(f"s_mov_b32 s{dst}, s{r}")
        a(f"s_mov_b32 s{dst+1}, s{r+1}")
        a(f"s_mov_b32 s{dst+2}, {nb}")
        a(f"s_mov_b32 s{dst+3}, 0x20000")
    for base in (S_X, S_K, S_V, S_WQ, S_WO, S_OUT, S_WS):
        a(f"s_and_b32 s{base+1}, s{base+1}, 0xffff")
    a(f"s_lshl_b32 s{sF1}, s{sBR}, 2")
    a(f"s_add_u32 s{sF1}, s{sF1}, s{sG}")
    a(f"s_lshl_b32 s{sF1}, s{sF1}, 3")
    a(f"s_add_u32 s{sF1}, s{sF1}, s{sB}")
    a(f"s_lshl_b32 s{sF1}, s{sF1}, 7")
    a(f"s_add_u32 s{sF1}, s{sF1}, {WS_FLAG}")
    a(f"s_lshl_b32 s{sF3}, s{sBR}, 3")
    a(f"s_add_u32 s{sF3}, s{sF3}, s{sB}")
    a(f"s_lshl_b32 s{sF3}, s{sF3}, 2")
    a(f"s_add_u32 s{sF3}, s{sF3}, s{sNQ}")
    a(f"s_lshl_b32 s{sF3}, s{sF3}, 7")
    a(f"s_add_u32 s{sF3}, s{sF3}, {WS_FLAG + 32*KB}")

vAK, vAV, vAW, vAX = 16, 24, 28, 32
vL, vPS, vPSB = 36, 37, 38
vAO, vAB, vLIN, vZc, vFL = 40, 41, 42, 43, 44
S0, S1, NEG, P0, P1 = 48, 64, 80, 96, 104
VF = 112
OACC = 176
TMP = 240
aQF2, aQF, aKF = 128, 160, 192
aACC2, aRING = 0, 80
OF = 48
PF = 80
QA = [48, 112]
QB = 176

def call(a, lbl): a(f"s_call_b64 s[{sRET}:{sRET+1}], {lbl}")
def vr(b, n): return f"v[{b}:{b+n-1}]"
def ar(b, n): return f"a[{b}:{b+n-1}]"

def lane_setup_compute(a):
    a("v_lshrrev_b32 v2, 5, v1")
    a("v_and_b32 v3, 31, v1")
    a("v_and_b32 v4, 15, v1")
    a("v_xor_b32 v4, v4, v2")
    a("v_lshlrev_b32 v5, 8, v3")
    for s in range(8):
        a(f"v_xor_b32 v6, {2*s}, v4")
        a(f"v_lshl_add_u32 v{vAK+s}, v6, 4, v5")
    a("v_lshrrev_b32 v6, 2, v1")
    a("v_and_b32 v6, 3, v6")
    a("v_and_b32 v7, 3, v1")
    a("v_and_b32 v8, 1, v7")
    a("v_lshlrev_b32 v8, 1, v8")
    a("v_lshrrev_b32 v9, 1, v7")
    a("v_or_b32 v8, v8, v9")
    a("v_lshlrev_b32 v8, 3, v8")
    a("v_lshrrev_b32 v9, 4, v1")
    a("v_and_b32 v9, 1, v9")
    a("v_lshl_add_u32 v8, v9, 5, v8")
    a("v_lshl_add_u32 v10, v2, 2, v6")
    a("v_lshlrev_b32 v10, 8, v10")
    a("v_add_u32 v10, v10, v8")
    a("v_lshl_add_u32 v11, v2, 3, v6")
    a(f"s_movk_i32 s{sT0}, 320")
    a(f"v_mul_lo_u32 v{vAO}, v11, s{sT0}")
    a(f"v_add_u32 v{vAO}, v{vAO}, v8")
    a("v_lshlrev_b32 v11, 8, v11")
    a("v_add_u32 v11, v11, v8")
    for t in range(4):
        a(f"v_xor_b32 v12, {t}, v6")
        a(f"v_lshlrev_b32 v12, 6, v12")
        a(f"v_add_u32 v{vAV+t}, v10, v12")
        a(f"v_add_u32 v{vAW+t}, v11, v12")
        a(f"v_add_u32 v{vAV+t}, {16*KB}, v{vAV+t}")
        a(f"v_add_u32 v{vAW+t}, {64*KB}, v{vAW+t}")
    a(f"s_lshl_b32 s{sT0}, s{sWAVE}, 5")
    a(f"v_add_u32 v12, s{sT0}, v3")
    a("v_lshrrev_b32 v13, 1, v12")
    a("v_and_b32 v13, 7, v13")
    a("v_xor_b32 v13, v13, v2")
    a("v_lshlrev_b32 v14, 7, v12")
    for s in range(4):
        a(f"v_xor_b32 v15, {2*s}, v13")
        a(f"v_lshl_add_u32 v{vAX+s}, v15, 4, v14")
        a(f"v_add_u32 v{vAX+s}, {128*KB}, v{vAX+s}")
    a(f"s_lshl_b32 s{sT0}, s{sWAVE}, 12")
    a(f"s_add_u32 s{sT0}, s{sT0}, {20*KB}")
    a(f"v_lshlrev_b32 v{vLIN}, 4, v1")
    a(f"v_add_u32 v{vAB}, s{sT0}, v{vLIN}")
    a(f"v_mov_b32 v{vZc}, 0")

WSLOT = lambda s: 64*KB + (s % 4) * 16*KB
XSLOT = lambda m: 128*KB + (m % 2) * 12*KB

def q_phase(a):
    def fa(st, hd, ks, t): return 128*st + ((hd*2 + ks)*4 + t)*4
    def fb(st, ks): return QB + 16*st + 4*ks
    def reads(s):
        st = s & 1; L = []
        for ks in range(2):
            L.append(f"ds_read_b128 {vr(fb(st,ks),4)}, v{vAX + 2*(s&1) + ks} offset:{((s//2) % 2)*12*KB}")
        for hd in range(2):
            for ks in range(2):
                for t in range(4):
                    for jj in range(2):
                        L.append(f"ds_read_b64_tr_b16 {ar(fa(st,hd,ks,t)+2*jj,2)}, v{vAW+t} offset:{(s%4)*16*KB + hd*8*KB + (16*ks+4*jj)*256}")
        return L
    def mf(s):
        st = s & 1
        return [f"v_mfma_f32_32x32x16_bf16 {vr(QA[hd]+16*t,16)}, {ar(fa(st,hd,ks,t),4)}, {vr(fb(st,ks),4)}, {vr(QA[hd]+16*t,16)}"
                for hd in range(2) for ks in range(2) for t in range(4)]
    for hd in range(2):
        for i in range(64): a(f"v_mov_b32 v{QA[hd]+i}, 0")
    a("s_barrier")
    for ins in reads(0): a(ins)
    a("s_waitcnt lgkmcnt(0)")
    a(f"s_mov_b32 s{sCNT}, 0")
    a.label("L_q_loop")
    for s in range(1, 5):
        a("s_barrier")
        for ins in interleave(mf(s-1), reads(s), every=3): a(ins)
        if s == 4:
            a(f"s_add_u32 s{sCNT}, s{sCNT}, 1")
            a(f"s_cmp_lt_u32 s{sCNT}, 5")
        a("s_waitcnt lgkmcnt(0)")
    a("s_cbranch_scc1 L_q_loop")
    a("s_nop 7"); a("s_nop 3")
    for i in range(64): a(f"v_mov_b32 v{OACC+i}, 0")
    for hd in range(2):
        dst = aQF if hd == 0 else aQF2
        for t in range(4):
            for r in range(0, 16, 2):
                src = QA[hd] + 16*t + r
                tmp = TMP + (r % 8)
                a(f"v_mul_f32 v{tmp}, s{sSCALE}, v{src}")
                a(f"v_mul_f32 v{tmp+1}, s{sSCALE}, v{src+1}")
                a(f"v_cvt_pk_bf16_f32 v{tmp}, v{tmp}, v{tmp+1}")
                a(f"v_accvgpr_write_b32 a{dst + (2*t + r//8)*4 + (r%8)//2}, v{tmp}")

def sm_list(S, P):
    L = []
    for r in range(0, 16, 4):
        for e in range(4):
            L.append(f"v_exp_f32 v{TMP+r+e}, v{S+r+e}")
        if r == 0:
            L.append(f"v_add_f32 v{vPS}, v{TMP}, v{TMP+1}")
            L.append(f"v_add_f32 v{vPSB}, v{TMP+2}, v{TMP+3}")
        else:
            L.append(f"v_add_f32 v{vPS}, v{vPS}, v{TMP+r}")
            L.append(f"v_add_f32 v{vPSB}, v{vPSB}, v{TMP+r+2}")
            L.append(f"v_add_f32 v{vPS}, v{vPS}, v{TMP+r+1}")
            L.append(f"v_add_f32 v{vPSB}, v{vPSB}, v{TMP+r+3}")
        L.append(f"v_cvt_pk_bf16_f32 v{P+r//2}, v{TMP+r}, v{TMP+r+1}")
        L.append(f"v_cvt_pk_bf16_f32 v{P+r//2+1}, v{TMP+r+2}, v{TMP+r+3}")
    L.append(f"v_add_f32 v{vPS}, v{vPS}, v{vPSB}")
    return L
def qk_mfma(T, s, czero=False):
    S = S0 if T == 0 else S1
    c = ("0" if czero else vr(NEG, 16)) if s == 0 else vr(S, 16)
    return f"v_mfma_f32_32x32x16_bf16 {vr(S,16)}, {ar(aKF + (T*8+s)*4, 4)}, {ar(aQF+4*s,4)}, {c}"
def pv_mfma(T, m, t):
    P = P0 if T == 0 else P1
    return f"v_mfma_f32_32x32x16_bf16 {vr(OACC+16*t,16)}, {vr(VF + ((T*2+m)*4+t)*4, 4)}, {vr(P+4*m,4)}, {vr(OACC+16*t,16)}"
def k_read(T, s):
    return f"ds_read_b128 {ar(aKF+(T*8+s)*4,4)}, v{vAK+s} offset:{T*8192}"
def v_read(T, m, t, jj):
    return f"ds_read_b64_tr_b16 {vr(VF+((T*2+m)*4+t)*4+2*jj,2)}, v{vAV+t} offset:{(32*T+16*m+8*jj)*256}"
def rowmax(a, S):
    a(f"v_max3_f32 v2, v{S}, v{S+1}, v{S+2}")
    for r in range(3, 15, 2):
        a(f"v_max3_f32 v2, v2, v{S+r}, v{S+r+1}")
    a(f"v_max_f32 v2, v2, v{S+15}")
    a("v_mov_b32 v3, v2")
    a("s_nop 1")
    a("v_permlane32_swap_b32 v2, v3")
    a("v_max_f32 v2, v2, v3")
def slow_path(a, T):
    S = S0 if T == 0 else S1
    So = S1 if T == 0 else S0
    P = P0 if T == 0 else P1
    a.label(f"L_slow{T}")
    a("s_nop 15"); a("s_nop 7")
    rowmax(a, S)
    a("v_max_f32 v2, 0, v2")
    a("v_sub_f32 v3, 0, v2")
    a("v_exp_f32 v3, v3")
    a("s_nop 0")
    a(f"v_mul_f32 v{vL}, v{vL}, v3")
    for i in range(64): a(f"v_mul_f32 v{OACC+i}, v{OACC+i}, v3")
    for i in range(16): a(f"v_sub_f32 v{NEG+i}, v{NEG+i}, v2")
    for i in range(16): a(f"v_sub_f32 v{S+i}, v{S+i}, v2")
    for i in range(16): a(f"v_sub_f32 v{So+i}, v{So+i}, v2")
    for ins in sm_list(S, P): a(ins)
    a("s_nop 1")
    a(f"s_branch L_cont{T}")

def unit_prologue(a):
    a.label("L_uprol")
    a(f"s_cmp_eq_u32 s{sUNIT}, 0")
    a("s_cbranch_scc0 L_uprol_nok")
    for T in range(2):
        for s in range(8): a(k_read(T, s))
    a("s_waitcnt lgkmcnt(0)")
    a.label("L_uprol_nok")
    for s in range(8): a(qk_mfma(0, s, czero=True))
    for i in range(8): a(f"v_mov_b32 v{P1+i}, 0")
    for i in range(32): a(f"v_mov_b32 v{VF+32+i}, 0")
    a(f"v_mov_b32 v{vL}, 0")
    a("s_nop 7")
    rowmax(a, S0)
    for i in range(16): a(f"v_sub_f32 v{NEG+i}, 0, v2")
    for i in range(16): a(f"v_sub_f32 v{S0+i}, v{S0+i}, v2")
    a(f"s_setpc_b64 s[{sRET}:{sRET+1}]")

def attn_half(a, T, adv):
    O = 1 - T
    mf = []
    for i in range(8):
        mf.append(qk_mfma(O, i)); mf.append(pv_mfma(O, i // 4, i % 4))
    reads = [k_read(T, s) for s in range(8)] + [v_read(T, m, t, jj) for m in range(2) for t in range(4) for jj in range(2)]
    sm = sm_list(S0 if T == 0 else S1, P0 if T == 0 else P1)
    gaps = [[] for _ in range(16)]
    if adv:
        addr = [f"v_add_u32 v{vAK+s}, s{sDELTA}, v{vAK+s}" for s in range(8)] + [f"v_add_u32 v{vAV+t}, s{sDELTA}, v{vAV+t}" for t in range(4)]
        gaps[0] += addr[:6]; gaps[1] += addr[6:]; r0 = 2
    else:
        r0 = 0
    ri = 0
    for g in range(r0, 16):
        n = 2 if g < r0 + 12 else 0
        for _ in range(n):
            if ri < len(reads): gaps[g].append(reads[ri]); ri += 1
    assert ri == len(reads)
    s0 = 2; ng = 16 - s0; si = 0
    for g in range(s0, 16):
        tgt = (len(sm) * (g - s0 + 1) + ng - 1) // ng
        while si < tgt:
            gaps[g].append(sm[si]); si += 1
    for g in range(16):
        a(mf[g])
        for ins in gaps[g]: a(ins)
    a(f"v_cmp_nge_f32 vcc, s{sTHR}, v{vPS}")
    a("s_waitcnt lgkmcnt(0)")
    a(f"s_cbranch_vccnz L_slow{T}")
    a.label(f"L_cont{T}")
    a(f"v_add_f32 v{vL}, v{vL}, v{vPS}")

def attn_loop(a):
    a.label("L_attn")
    if STAMPS:
        a("s_memtime s[98:99]"); a("s_waitcnt lgkmcnt(0)"); a("s_mov_b32 s97, s98")
    a("s_barrier")
    if STAMPS:
        a("s_memtime s[98:99]"); a("s_waitcnt lgkmcnt(0)"); a("s_sub_u32 s97, s98, s97"); a(f"s_add_u32 s{sTM+11}, s{sTM+11}, s97")
    attn_half(a, 0, True)
    attn_half(a, 1, False)
    a(f"s_add_u32 s{sSLOT}, s{sSLOT}, 1")
    a(f"s_cmp_eq_u32 s{sSLOT}, 3")
    a(f"s_cselect_b32 s{sSLOT}, 0, s{sSLOT}")
    a(f"s_mov_b32 s{sT0}, {32*KB}")
    a(f"s_cmp_eq_u32 s{sSLOT}, 0")
    a(f"s_cselect_b32 s{sDELTA}, {(-64*KB) & 0xffffffff}, s{sT0}")
    a(f"s_sub_u32 s{sN}, s{sN}, 1")
    a(f"s_cmp_lg_u32 s{sN}, 0")
    a("s_cbranch_scc1 L_attn")
    a(f"s_setpc_b64 s[{sRET}:{sRET+1}]")

def flag_store_wave(a, sgrp, extra, sidx):
    a(f"s_lshl_b32 s{sT2}, s{sidx}, 2")
    a(f"s_lshl_b32 s{sT3}, s{sWAVE}, 4")
    a(f"s_add_u32 s{sT2}, s{sT2}, s{sT3}")
    a(f"s_add_u32 s{sT2}, s{sT2}, s{sgrp}")
    if extra: a(f"s_add_u32 s{sT2}, s{sT2}, {extra}")
    a(f"v_mov_b32 v{vFL}, s{sNONCE}")
    a("s_mov_b64 exec, 1")
    a(f"buffer_store_dword v{vFL}, v{vZc}, {srd(S_WS)}, s{sT2} offen sc1")
    a("s_mov_b64 exec, -1")

def poll_wave(a, sgrp, extra, tag, P):
    a(f"s_lshl_b32 s{sT3}, s{sWAVE}, 4")
    a(f"s_add_u32 s{sT3}, s{sT3}, s{sgrp}")
    if extra: a(f"s_add_u32 s{sT3}, s{sT3}, {extra}")
    a(f"s_mov_b32 s{sT1}, 0")
    a.label(f"L_pw_{tag}")
    a(f"buffer_load_dwordx4 {vr(vFL,4)}, v{vZc}, {srd(S_WS)}, s{sT3} offen sc1")
    a("s_waitcnt vmcnt(0)")
    for e in range(4): a(f"v_xor_b32 v{vFL+e}, s{sNONCE}, v{vFL+e}")
    a(f"v_or_b32 v{vFL}, v{vFL}, v{vFL+1}")
    a(f"v_or_b32 v{vFL+2}, v{vFL+2}, v{vFL+3}")
    a(f"v_or_b32 v{vFL}, v{vFL}, v{vFL+2}")
    a("s_nop 0")
    a(f"v_readfirstlane_b32 s{sT0}, v{vFL}")
    a(f"s_add_u32 s{sT1}, s{sT1}, 1")
    a(f"s_cmp_eq_u32 s{sT0}, 0")
    a(f"s_cbranch_scc1 L_pw_{tag}_done")
    a(f"s_cmp_ge_u32 s{sT1}, {P.get('spin', 200000)}")
    a(f"s_cbranch_scc1 L_pw_{tag}_done")
    a("s_sleep 1")
    a(f"s_branch L_pw_{tag}")
    a.label(f"L_pw_{tag}_done")

def unit_epilogue(a):
    a.label("L_uepi")
    for m in range(2):
        for t in range(4): a(pv_mfma(1, m, t))
    a(f"v_mov_b32 v2, v{vL}")
    a(f"v_mov_b32 v3, v{vL}")
    a(f"s_lshl_b32 s{sT0}, s{sBR}, 3")
    a(f"s_add_u32 s{sT0}, s{sT0}, s{sB}")
    a("v_permlane32_swap_b32 v2, v3")
    a(f"s_lshl_b32 s{sT0}, s{sT0}, 5")
    a("v_add_f32 v2, v2, v3")
    a(f"s_add_u32 s{sT0}, s{sT0}, s{sH}")
    a("v_rcp_f32 v2, v2")
    a(f"s_mul_i32 s{sT0}, s{sT0}, 3")
    a(f"s_add_u32 s{sT0}, s{sT0}, s{sWAVE}")
    a(f"s_lshl_b32 s{sT0}, s{sT0}, 13")
    a(f"s_add_u32 s{sT0}, s{sT0}, {WS_O}")
    a("s_nop 7")
    for t in range(4):
        for hf in range(2):
            base = OACC + 16*t + 8*hf
            s = 2*t + hf
            d = OF + 4*s
            for e in range(0, 8): a(f"v_mul_f32 v{base+e}, v{base+e}, v2")
            for e in range(0, 8, 2): a(f"v_cvt_pk_bf16_f32 v{d+e//2}, v{base+e}, v{base+e+1}")
            a(f"buffer_store_dwordx4 {vr(d,4)}, v{vLIN}, {srd(S_WS)}, s{sT0} offen offset:{(s%4)*1024} sc1")
            if s % 4 == 3: a(f"s_add_u32 s{sT0}, s{sT0}, 4096")
    a(f"s_setpc_b64 s[{sRET}:{sRET+1}]")

def ks_stream(a, steps, pre=None, hooks=None, nsets=4):
    def fa(i, t): return aRING + ((i % nsets)*5 + t)*4
    def rd(i):
        st = steps[i]; L = []
        if st['b'][0] == 'lds':
            L.append(f"ds_read_b128 {vr(TMP + (i % 4)*4, 4)}, v{st['b'][1]} offset:{st['b'][2]}")
        for t in range(5):
            for jj in range(2):
                L.append(f"ds_read_b64_tr_b16 {ar(fa(i,t)+2*jj,2)}, v{st['a'][0]} offset:{st['a'][1] + 4*jj*320 + 64*t}")
        return L
    def mf(i):
        st = steps[i]
        b = vr(TMP + (i % 4)*4, 4) if st['b'][0] == 'lds' else vr(st['b'][1], 4)
        return [f"v_mfma_f32_32x32x16_bf16 {ar(aACC2+16*t,16)}, {ar(fa(i,t),4)}, {b}, {ar(aACC2+16*t,16)}" for t in range(5)]
    n = len(steps)
    cnt = lambda i: len(rd(i))
    LA = 2
    for i in range(min(LA, n)):
        for ins in steps[i].get('pre', []): a(ins)
        for ins in rd(i): a(ins)
    for i in range(n):
        later = sum(cnt(j) for j in range(i+1, min(i+LA, n)))
        for ins in steps[i].get('wait', []): a(ins)
        a(f"s_waitcnt lgkmcnt({min(later,15)})")
        nxt = []
        if i + LA < n:
            nxt = list(steps[i+LA].get('pre', [])) + rd(i+LA)
        for ins in interleave(mf(i), nxt, every=3): a(ins)
        for ins in steps[i].get('post', []): a(ins)

def oa_tile(a):
    a.label("L_oatile")
    a(f"v_add_u32 v4, s{sOFFA}, v{vAO}")
    a(f"v_add_u32 v5, s{sOFFA}, v{vAB}")
    steps = [dict(a=(4, 16*ks*320), b=('lds', 5, ks*1024)) for ks in range(4)]
    ks_stream(a, steps)
    a(f"s_setpc_b64 s[{sRET}:{sRET+1}]")

def own_tiles(a):
    a.label("L_own")
    a(f"v_add_u32 v4, s{sOFFA}, v{vAO}")
    a(f"v_add_u32 v5, s{sOFFB}, v{vAO}")
    steps = [dict(a=(4 + (k // 4), 16*(k % 4)*320), b=('reg', OF + 4*k)) for k in range(8)]
    ks_stream(a, steps)
    a(f"s_setpc_b64 s[{sRET}:{sRET+1}]")

WB_POS = [80*KB, 100*KB, 120*KB, 140*KB, 0, 20*KB, 40*KB, 60*KB]

def tail(a, P):
    a("s_waitcnt vmcnt(0)")
    flag_store_wave(a, sF1, 16*KB, sNQ)
    stamp(a, 6)
    poll_wave(a, sF1, 16*KB, "f2", P)
    stamp(a, 7)
    a(f"s_lshl_b32 s{sT0}, s{sBR}, 3")
    a(f"s_add_u32 s{sT0}, s{sT0}, s{sB}")
    a(f"s_lshl_b32 s{sT0}, s{sT0}, 5")
    a(f"s_lshl_b32 s{sT1}, s{sG}, 3")
    a(f"s_add_u32 s{sT0}, s{sT0}, s{sT1}")
    a(f"s_add_u32 s{sT0}, s{sT0}, 4")
    for k in range(1, 4):
        a(f"s_add_u32 s{sT1}, s{sNQ}, {k}")
        a(f"s_and_b32 s{sT1}, s{sT1}, 3")
        a(f"s_add_u32 s{sT1}, s{sT1}, s{sT0}")
        a(f"s_mul_i32 s{sT1}, s{sT1}, 3")
        a(f"s_add_u32 s{sT1}, s{sT1}, s{sWAVE}")
        a(f"s_lshl_b32 s{sT1}, s{sT1}, 13")
        if WS_O: a(f"s_add_u32 s{sT1}, s{sT1}, {WS_O}")
        for s in range(8):
            if s == 4: a(f"s_add_u32 s{sT1}, s{sT1}, 4096")
            a(f"buffer_load_dwordx4 {vr(PF + (k-1)*32 + 4*s, 4)}, v{vLIN}, {srd(S_WS)}, s{sT1} offen offset:{(s%4)*1024}{' sc1' if P.get('osc1', 0) else ''}")
    a("s_barrier")
    for k in range(1, 4):
        a(f"s_waitcnt vmcnt({16 - 8*(k-1)})")
        for i in range(32): a(f"v_mov_b32 v{OF+i}, v{PF + (k-1)*32 + i}")
        a(f"s_mov_b32 s{sOFFA}, {WB_POS[2*k]}")
        a(f"s_mov_b32 s{sOFFB}, {WB_POS[2*k+1]}")
        call(a, "L_own")

def final_exchange(a, P):
    a("s_nop 7"); a("s_nop 7")
    a(f"s_lshl_b32 s{sT0}, s{sBR}, 3")
    a(f"s_add_u32 s{sT0}, s{sT0}, s{sB}")
    a(f"s_lshl_b32 s{sT0}, s{sT0}, 2")
    a(f"s_add_u32 s{sT0}, s{sT0}, s{sNQ}")
    a(f"s_mul_i32 s{sOFFA}, s{sT0}, {4*4*3*5*1024}")
    a(f"s_add_u32 s{sOFFA}, s{sOFFA}, {WS_PART}")
    a(f"s_mul_i32 s{sT2}, s{sWAVE}, {5*1024}")
    a(f"s_add_u32 s{sOFFA}, s{sOFFA}, s{sT2}")
    for dst in range(4):
        a(f"s_cmp_eq_u32 s{sG}, {dst}")
        a(f"s_cbranch_scc1 L_fx_skip{dst}")
        a(f"s_mul_i32 s{sT2}, s{sG}, {3*5*1024}")
        a(f"s_add_u32 s{sT2}, s{sT2}, {dst*4*3*5*1024}")
        a(f"s_add_u32 s{sT2}, s{sT2}, s{sOFFA}")
        for i in range(5):
            R = 5*dst + i
            if i == 4: a(f"s_add_u32 s{sT2}, s{sT2}, 4096")
            a(f"buffer_store_dwordx4 {ar(aACC2+4*R,4)}, v{vLIN}, {srd(S_WS)}, s{sT2} offen offset:{(i%4)*1024} sc1")
        a.label(f"L_fx_skip{dst}")
    for g in range(4):
        a(f"s_cmp_eq_u32 s{sG}, {g}")
        a(f"s_cbranch_scc0 L_fx_own{g}")
        for i in range(20): a(f"v_accvgpr_read_b32 v{48+i}, a{aACC2+20*g+i}")
        a.label(f"L_fx_own{g}")
    a("s_waitcnt vmcnt(0)")
    flag_store_wave(a, sF3, 0, sG)
    stamp(a, 8)
    poll_wave(a, sF3, 0, "f3", P)
    a(f"s_mul_i32 s{sT2}, s{sG}, {4*3*5*1024}")
    a(f"s_add_u32 s{sOFFA}, s{sOFFA}, s{sT2}")
    for k in range(1, 4):
        a(f"s_add_u32 s{sT2}, s{sG}, {k}")
        a(f"s_and_b32 s{sT2}, s{sT2}, 3")
        a(f"s_mul_i32 s{sT2}, s{sT2}, {3*5*1024}")
        a(f"s_add_u32 s{sT2}, s{sT2}, s{sOFFA}")
        for i in range(5):
            if i == 4: a(f"s_add_u32 s{sT2}, s{sT2}, 4096")
            d = 68 + (k-1)*20 + 4*i
            a(f"buffer_load_dwordx4 {vr(d,4)}, v{vLIN}, {srd(S_WS)}, s{sT2} offen offset:{(i%4)*1024}{' sc1' if P.get('osc1', 0) else ''}")
    a("v_and_b32 v5, 31, v1")
    a("v_lshrrev_b32 v6, 5, v1")
    a(f"s_mul_i32 s{sT0}, s{sB}, 96")
    a(f"s_lshl_b32 s{sT1}, s{sWAVE}, 5")
    a(f"s_add_u32 s{sT0}, s{sT0}, s{sT1}")
    a(f"v_add_u32 v5, s{sT0}, v5")
    a(f"s_movk_i32 s{sT1}, 2560")
    a(f"v_mul_lo_u32 v5, v5, s{sT1}")
    a("v_lshl_add_u32 v5, v6, 4, v5")
    a(f"s_mul_i32 s{sT0}, s{sBR}, 1280")
    a(f"s_mul_i32 s{sT1}, s{sNQ}, 320")
    a(f"s_add_u32 s{sT0}, s{sT0}, s{sT1}")
    a("s_waitcnt vmcnt(0)")
    for i in range(5):
        for e in range(4):
            d = 48 + i*4 + e
            a(f"v_add_f32 v{d}, v{d}, v{d+20}")
            a(f"v_add_f32 v{d+40}, v{d+40}, v{d+60}")
            a(f"v_add_f32 v{d}, v{d}, v{d+40}")
        d = 48 + i*4
        a(f"v_cvt_pk_bf16_f32 v{d}, v{d}, v{d+1}")
        a(f"v_cvt_pk_bf16_f32 v{d+1}, v{d+2}, v{d+3}")
        a(f"s_mul_i32 s{sT1}, s{sG}, 5")
        a(f"s_add_u32 s{sT1}, s{sT1}, {i}")
        a(f"s_lshr_b32 s{sT2}, s{sT1}, 1")
        a(f"s_lshl_b32 s{sT2}, s{sT2}, 5")
        a(f"s_and_b32 s{sT3}, s{sT1}, 1")
        a(f"s_lshl_b32 s{sT3}, s{sT3}, 3")
        a(f"s_add_u32 s{sT2}, s{sT2}, s{sT3}")
        a(f"s_add_u32 s{sT2}, s{sT2}, s{sT0}")
        a(f"buffer_store_dwordx2 {vr(d,2)}, v5, {srd(S_OUT)}, s{sT2} offen")

class VmQ:
    def __init__(self): self.n = 0; self.mark = {}
    def issued(self, tag, cnt):
        self.n += cnt; self.mark[tag] = self.n
    def wait(self, *tags):
        later = min(self.n - self.mark[t] for t in tags)
        return f"s_waitcnt vmcnt({min(later, 63)})"

vKo, vVo, vWq_, vXo, vWo_, vLin, vZ, vPI = 16, 20, 24, 28, 32, 37, 38, 39
vPOLL = 40
def loader_setup(a):
    a("v_lshrrev_b32 v2, 4, v1")
    a("v_and_b32 v3, 15, v1")
    for e in range(4):
        a(f"v_add_u32 v4, {4*e}, v2")
        a("v_xor_b32 v4, v4, v3")
        a("v_lshlrev_b32 v4, 4, v4")
        a(f"v_lshl_add_u32 v{vKo+e}, v2, 8, v4")
    a("v_lshlrev_b32 v4, 2, v2")
    a("v_xor_b32 v4, v4, v3")
    a("v_lshlrev_b32 v4, 4, v4")
    a(f"v_lshl_add_u32 v{vVo}, v2, 8, v4")
    a("v_lshlrev_b32 v5, 13, v2")
    a("v_add_u32 v5, v5, v4")
    for e in range(4): a(f"v_add_u32 v{vWq_+e}, {e*(32768-1024)}, v5")
    a("v_lshrrev_b32 v6, 3, v1")
    a("v_and_b32 v7, 7, v1")
    a(f"s_movk_i32 s{sT0}, 1280")
    a(f"v_mul_lo_u32 v6, v6, s{sT0}")
    for e in range(4):
        a(f"v_add_u32 v8, {4*(e&1)}, v2")
        a("v_xor_b32 v8, v8, v7")
        a("v_lshl_add_u32 v8, v8, 4, v6")
        a(f"v_add_u32 v{vXo+e}, {e*(10240-1024)}, v8")
    a(f"s_movk_i32 s{sT0}, 3277")
    for e in range(5):
        a(f"v_add_u32 v2, {64*e}, v1")
        a(f"v_mul_lo_u32 v3, v2, s{sT0}")
        a("v_lshrrev_b32 v3, 16, v3")
        a("v_mul_u32_u24 v4, 20, v3")
        a("v_sub_u32 v4, v2, v4")
        a("v_mul_u32_u24 v3, 1280, v3")
        a("v_lshl_add_u32 v3, v4, 4, v3")
        if e < 4: a(f"v_subrev_u32 v{vWo_+e}, {e*1024}, v3")
        else: a(f"v_mov_b32 v{vWo_+e}, v3")
    a(f"v_lshlrev_b32 v{vLin}, 4, v1")
    a(f"v_mov_b32 v{vZ}, 0")
    a(f"v_lshlrev_b32 v{vPI}, 2, v1")
    a("v_cmp_gt_u32 vcc, 12, v1")
    a("s_nop 1")
    a(f"v_cndmask_b32 v{vPI}, 0, v{vPI}, vcc")

def loader_routines(a, P):
    ret = f"s_setpc_b64 s[{sRET}:{sRET+1}]"
    pol = P.get('kvpol', " nt")
    wpol = " nt" if P.get('ntw', 1) else ""
    opol = " sc1" if P.get('osc1', 0) else ""
    wopol = " nt" if P.get('ntwo', 0) else ""
    a.label("L_ldk")
    for m in range(4):
        a(f"s_add_u32 m0, s{sOFFB}, {m*4096}")
        a(f"s_add_u32 s{sT0}, s{sOFFA}, {m*4096}")
        for e in range(4): a(f"buffer_load_dwordx4 v{vKo+e}, {srd(S_K)}, s{sT0} offen offset:{e*1024}{pol} lds")
    a(ret)
    a.label("L_ldv")
    for m in range(4):
        a(f"s_add_u32 m0, s{sOFFB}, {m*4096}")
        a(f"s_add_u32 s{sT0}, s{sOFFA}, {m*4096}")
        for e in range(4): a(f"buffer_load_dwordx4 v{vVo}, {srd(S_V)}, s{sT0} offen offset:{e*1024}{pol} lds")
    a(ret)
    a.label("L_ldwq")
    for hd in range(2):
        for m in range(2):
            a(f"s_add_u32 m0, s{sOFFB}, {hd*8192 + m*4096}")
            a(f"s_add_u32 s{sT0}, s{sOFFA}, {hd*1024 + m*131072}")
            for e in range(4): a(f"buffer_load_dwordx4 v{vWq_+e}, {srd(S_WQ)}, s{sT0} offen offset:{e*1024}{wpol} lds")
    a(ret)
    a.label("L_ldx")
    for m in range(3):
        a(f"s_add_u32 m0, s{sOFFB}, {m*4096}")
        a(f"s_add_u32 s{sT0}, s{sOFFA}, {m*40960}")
        for e in range(4): a(f"buffer_load_dwordx4 v{vXo+e}, {srd(S_X)}, s{sT0} offen offset:{e*1024}{wpol} lds")
    a(ret)
    a.label("L_ldwo")
    for m in range(4):
        a(f"s_add_u32 m0, s{sOFFB}, {m*5*1024}")
        a(f"s_add_u32 s{sT0}, s{sOFFA}, {m*16*1280}")
        for e in range(4): a(f"buffer_load_dwordx4 v{vWo_+e}, {srd(S_WO)}, s{sT0} offen offset:{e*1024}{wopol} lds")
        a(f"s_add_u32 m0, s{sOFFB}, {m*5*1024 + 4096}")
        a("s_nop 0")
        a(f"buffer_load_dwordx4 v{vWo_+4}, {srd(S_WO)}, s{sT0} offen{wopol} lds")
    a(ret)
    a.label("L_ldo")
    for j in range(3):
        a(f"s_add_u32 m0, s{sOFFB}, {j*4096}")
        a(f"s_add_u32 s{sT0}, s{sOFFA}, {j*8192}")
        for e in range(4): a(f"buffer_load_dwordx4 v{vLin}, {srd(S_WS)}, s{sT0} offen offset:{e*1024}{opol} lds")
    a(ret)
    a.label("L_poll")
    a(f"s_mov_b32 s{sT1}, 0")
    a.label("L_poll_loop")
    a(f"buffer_load_dword v{vPOLL}, v{vPI}, {srd(S_WS)}, s{sOFFA} offen sc1")
    a("s_waitcnt vmcnt(0)")
    a(f"v_cmp_ne_u32 vcc, s{sNONCE}, v{vPOLL}")
    a(f"s_add_u32 s{sT1}, s{sT1}, 1")
    a("s_cbranch_vccz L_poll_done")
    a(f"s_cmp_ge_u32 s{sT1}, {P.get('spin', 200000)}")
    a("s_cbranch_scc1 L_poll_done")
    a("s_sleep 1")
    a("s_branch L_poll_loop")
    a.label("L_poll_done")
    a(ret)


def loader_main(a, P):
    V = VmQ()
    ev(a, 60, 'start')
    sCH, sXB, sU0, sU1, sH1, sWOB, sOB = 40, 41, 42, 43, 44, 45, 46
    a(f"s_lshl_b32 s{sH1}, s{sG}, 3")
    a(f"s_add_u32 s{sH1}, s{sH1}, s{sNQ}")
    a(f"s_lshl_b32 s{sT2}, s{sB}, 5")
    a(f"s_add_u32 s{sU0}, s{sT2}, s{sH1}")
    a(f"s_lshl_b32 s{sU0}, s{sU0}, 17")
    a(f"s_add_u32 s{sU1}, s{sU0}, {4 << 17}")
    a(f"s_mul_i32 s{sXB}, s{sB}, {96*1280}")
    a(f"s_mul_i32 s{sT2}, s{sNQ}, 5")
    a(f"s_lshr_b32 s{sT2}, s{sT2}, 1")
    a(f"s_add_u32 s{sROT}, s{sT2}, s{sB}")
    a(f"s_cmp_ge_u32 s{sROT}, 10")
    a(f"s_cselect_b32 s{sT2}, 10, 0")
    a(f"s_sub_u32 s{sROT}, s{sROT}, s{sT2}")
    a(f"s_mul_i32 s{sWOB}, s{sG}, {8*128*1280}")
    a(f"s_mul_i32 s{sT1}, s{sNQ}, 320")
    a(f"s_add_u32 s{sWOB}, s{sWOB}, s{sT1}")
    a(f"s_lshl_b32 s{sOB}, s{sBR}, 3")
    a(f"s_add_u32 s{sOB}, s{sOB}, s{sB}")
    a(f"s_lshl_b32 s{sOB}, s{sOB}, 5")
    a(f"s_lshl_b32 s{sT1}, s{sG}, 3")
    a(f"s_add_u32 s{sOB}, s{sOB}, s{sT1}")
    a(f"s_mul_i32 s{sOB}, s{sOB}, {3*8*1024}")
    if WS_O: a(f"s_add_u32 s{sOB}, s{sOB}, {WS_O}")

    def w_tile(t):
        a(f"s_add_u32 s{sCH}, s{sROT}, {t // 2}")
        a(f"s_cmp_ge_u32 s{sCH}, 10")
        a(f"s_cselect_b32 s{sT2}, 10, 0")
        a(f"s_sub_u32 s{sCH}, s{sCH}, s{sT2}")
        a(f"s_lshl_b32 s{sOFFA}, s{sCH}, 19")
        a(f"s_lshl_b32 s{sT2}, s{sH1}, 8")
        a(f"s_add_u32 s{sOFFA}, s{sOFFA}, s{sT2}")
        if t & 1: a(f"s_add_u32 s{sOFFA}, s{sOFFA}, {32*8192}")
        a(f"s_mov_b32 s{sOFFB}, {WSLOT(t)}")
        call(a, "L_ldwq")
        V.issued(('W', t), 16)
    def x_tile(m):
        a(f"s_add_u32 s{sCH}, s{sROT}, {m}")
        a(f"s_cmp_ge_u32 s{sCH}, 10")
        a(f"s_cselect_b32 s{sT2}, 10, 0")
        a(f"s_sub_u32 s{sCH}, s{sCH}, s{sT2}")
        a(f"s_lshl_b32 s{sOFFA}, s{sCH}, 7")
        a(f"s_add_u32 s{sOFFA}, s{sOFFA}, s{sXB}")
        a(f"s_mov_b32 s{sOFFB}, {XSLOT(m)}")
        call(a, "L_ldx")
        V.issued(('X', m), 12)
    def kv(n):
        cnt = 0; base = (n % 3) * 32*KB
        if n <= 15:
            u, c = (sU0, n) if n <= 7 else (sU1, n - 8)
            a(f"s_add_u32 s{sOFFA}, s{u}, {c*16384}")
            a(f"s_mov_b32 s{sOFFB}, {base}")
            call(a, "L_ldk"); cnt += 16
        if n >= 1:
            u, c = (sU0, n - 1) if n <= 8 else (sU1, n - 9)
            a(f"s_add_u32 s{sOFFA}, s{u}, {c*16384}")
            a(f"s_mov_b32 s{sOFFB}, {base + 16*KB}")
            call(a, "L_ldv"); cnt += 16
        V.issued(('KV', n), cnt)
    def o_rot(i):
        a(f"s_lshl_b32 s{sCH}, s{sNQ}, 1")
        a(f"s_add_u32 s{sCH}, s{sCH}, {i}")
        a(f"s_and_b32 s{sCH}, s{sCH}, 7")
    def wo_tile(ph, i, base):
        o_rot(i)
        a(f"s_mul_i32 s{sOFFA}, s{sCH}, {64*1280}")
        a(f"s_add_u32 s{sOFFA}, s{sOFFA}, s{sWOB}")
        if ph == 1: a(f"s_add_u32 s{sOFFA}, s{sOFFA}, {4*128*1280}")
        a(f"s_mov_b32 s{sOFFB}, {base}")
        call(a, "L_ldwo")
        V.issued(('WO', ph, i), 20)
    def o_tile(ph, i, base):
        o_rot(i)
        a(f"s_lshr_b32 s{sT2}, s{sCH}, 1")
        a(f"s_mul_i32 s{sOFFA}, s{sT2}, {3*8*1024}")
        a(f"s_and_b32 s{sT2}, s{sCH}, 1")
        a(f"s_lshl_b32 s{sT2}, s{sT2}, 12")
        a(f"s_add_u32 s{sOFFA}, s{sOFFA}, s{sT2}")
        a(f"s_add_u32 s{sOFFA}, s{sOFFA}, s{sOB}")
        if ph == 1: a(f"s_add_u32 s{sOFFA}, s{sOFFA}, {4*3*8*1024}")
        a(f"s_mov_b32 s{sOFFB}, {base + 20*KB}")
        call(a, "L_ldo")
        V.issued(('O', ph, i), 12)
    def poll(sbase, extra):
        if extra: a(f"s_add_u32 s{sOFFA}, s{sbase}, {extra}")
        else: a(f"s_mov_b32 s{sOFFA}, s{sbase}")
        call(a, "L_poll")
        V.issued(('P', extra), 1)
        for k in list(V.mark): V.mark[k] = -1000
    def nonce_make():
        a("s_cmp_eq_u32 s2, 0")
        a("s_cbranch_scc0 L_nonce_skip")
        a("s_memrealtime s[50:51]")
        a("s_waitcnt lgkmcnt(0)")
        a("s_or_b32 s50, s50, 1")
        a("v_mov_b32 v44, s50")
        a("s_mov_b64 exec, 1")
        a(f"global_store_dword v{vZ}, v44, s[{sDBG}:{sDBG+1}] sc0 sc1")
        a("s_mov_b64 exec, -1")
        a("s_waitcnt vmcnt(0)")
        a.label("L_nonce_skip")
    def nonce_issue():
        a(f"global_load_dword v46, v{vZ}, s[{sDBG}:{sDBG+1}] sc0 sc1")
        V.issued('NONCE', 1)
    def nonce_get():
        a(V.wait('NONCE'))
        a(f"s_mov_b32 s{sT1}, 0")
        a.label("L_nonce_chk")
        a(f"v_readfirstlane_b32 s{sNONCE}, v46")
        a(f"s_add_u32 s{sT1}, s{sT1}, 1")
        a(f"s_cmp_lg_u32 s{sNONCE}, 0")
        a("s_cbranch_scc1 L_nonce_ok")
        a(f"s_cmp_ge_u32 s{sT1}, {P.get('spin', 200000)}")
        a("s_cbranch_scc1 L_nonce_ok")
        a(f"global_load_dword v46, v{vZ}, s[{sDBG}:{sDBG+1}] sc0 sc1")
        a("s_waitcnt vmcnt(0)")
        a("s_branch L_nonce_chk")
        a.label("L_nonce_ok")
        a(f"v_mov_b32 v44, s{sNONCE}")
        a(f"v_mov_b32 v45, {NONCE_LDS}")
        a("ds_write_b32 v45, v44")
        a("s_waitcnt lgkmcnt(0)")
    def wo_touch():
        a(f"s_lshl_b32 s{sT1}, s{sB}, 2")
        a(f"s_add_u32 s{sT1}, s{sT1}, s{sNQ}")
        a(f"s_mul_i32 s{sT1}, s{sT1}, 40960")
        a(f"s_mul_i32 s{sT2}, s{sG}, {8*128*1280}")
        a(f"s_add_u32 s{sT1}, s{sT1}, s{sT2}")
        a(f"v_lshlrev_b32 v47, 7, v1")
        for i in range(5):
            a(f"buffer_load_dword v{48+i}, v47, {srd(S_WO)}, s{sT1} offen{' nt' if P.get('ntwo', 0) else ''}")
            a(f"s_add_u32 s{sT1}, s{sT1}, 8192")
        V.issued('TOUCH', 5)
    def wo_touch_thin(k):
        a(f"s_lshl_b32 s{sT1}, s{sB}, 2")
        a(f"s_add_u32 s{sT1}, s{sT1}, s{sNQ}")
        a(f"s_mul_i32 s{sT1}, s{sT1}, 20480")
        a(f"s_mul_i32 s{sT2}, s{sG}, {8*128*1280}")
        a(f"s_add_u32 s{sT1}, s{sT1}, s{sT2}")
        a(f"s_add_u32 s{sT1}, s{sT1}, {(k // 4)*655360 + (k % 4)*5120}")
        a(f"v_lshlrev_b32 v47, 7, v1")
        a("s_mov_b32 exec_hi, 0xff")
        a(f"buffer_load_dword v48, v47, {srd(S_WO)}, s{sT1} offen")
        a("s_mov_b64 exec, -1")
        V.issued(('TT', k), 1)
    OA_BASE = lambda j: 96*KB + (j % 2) * 32*KB

    kvq = P.get('kvq', [16, 17])
    if P.get('ctouch', 1):
        nl = P.get('clines', 5)
        a("s_getpc_b64 s[52:53]")
        a.label("L_pc_ref")
        a(f"s_sub_u32 s52, s52, L_pc_ref-{NAME}_kernel")
        a("s_subb_u32 s53, s53, 0")
        a(f"s_lshl_b32 s{sT1}, s{sB}, 2")
        a(f"s_add_u32 s{sT1}, s{sT1}, s{sNQ}")
        a(f"s_mul_i32 s{sT1}, s{sT1}, {nl*128}")
        a("v_lshlrev_b32 v47, 7, v1")
        a(f"v_add_u32 v47, s{sT1}, v47")
        a(f"s_mov_b64 exec, {(1 << nl) - 1}")
        a("global_load_dword v53, v47, s[52:53]")
        a("s_mov_b64 exec, -1")
        V.issued('CT', 1)
    nonce_make()
    x_tile(0); w_tile(0); w_tile(1)
    stamp(a, 2)
    first = {0: [('w', 2), ('x', 1), ('w', 3)]}
    for b in range(21):
        w = [('W', b), ('X', b // 2)] if b <= 19 else [('KV', 0)]
        a(V.wait(*w))
        a("s_barrier"); ev(a, 60, "bar")
        if b == 0:
            w_tile(2); x_tile(1); w_tile(3)
        if b >= 2 and b % 2 == 0 and b // 2 + 1 <= 9: x_tile(b // 2 + 1)
        if b >= 1 and b + 3 <= 19: w_tile(b + 3)
        if b == kvq[0]: kv(0)
        if b == kvq[1]: kv(1)
        if b == P.get('touchb', -1) and P.get('touch', 1): wo_touch()
        if b == 20: kv(2)
    stamp(a, 3)
    for c in range(8):
        a(V.wait(('KV', c + 1)));
        a("s_barrier"); ev(a, 60, "bar")
        if c == 1: nonce_issue()
        if c == P.get('touchc', -1) and P.get('touch', 1): wo_touch()
        if c == 5:
            wo_tile(0, 0, 96*KB); wo_tile(0, 1, 116*KB)
        if P.get('thin', 1): wo_touch_thin(c)
        kv(c + 3)
        if c == 3: nonce_get()
    a(V.wait(('WO', 0, 0), ('WO', 0, 1)))
    a("s_barrier"); ev(a, 60, "bar")
    kv(11)
    stamp(a, 4)
    for p in range(8):
        w = [('KV', p + 9)]
        if p >= 2: w += [('WO', 0, p), ('O', 0, p)]
        a(V.wait(*w))
        a("s_barrier"); ev(a, 60, "bar")
        if p == 0:
            wo_tile(0, 2, OA_BASE(0))
            poll(sF1, 0)
            o_tile(0, 2, OA_BASE(0))
        if p == 1:
            wo_tile(0, 3, OA_BASE(1)); o_tile(0, 3, OA_BASE(1))
        if 3 <= p <= 6:
            wo_tile(0, p + 1, OA_BASE(p - 1)); o_tile(0, p + 1, OA_BASE(p - 1))
        if p == 7:
            wo_tile(1, 0, WB_POS[0]); wo_tile(1, 1, WB_POS[1]); wo_tile(1, 4, WB_POS[4])
        if p >= 1 and p + 11 <= 16: kv(p + 11)
    stamp(a, 5)
    a(V.wait(('WO', 1, 0), ('WO', 1, 1)))
    a("s_barrier"); ev(a, 60, "bar")
    for i in (2, 3, 5, 6, 7): wo_tile(1, i, WB_POS[i])
    a("s_waitcnt vmcnt(0)")
    stamp(a, 6)
    a("s_barrier"); ev(a, 60, "bar")

def gen(P):
    a = Asm()
    kn = NAME + "_kernel"
    a.raw('.amdgcn_target "amdgcn-amd-amdhsa--gfx950"')
    a.raw(".text"); a.raw(f".globl {kn}"); a.raw(".p2align 8"); a.raw(f".type {kn},@function"); a.raw(f"{kn}:")
    prologue(a, 256)
    stamp_rt(a, 0); stamp(a, 1)
    if STAMPS:
        a(f"s_mov_b32 s{sTM+11}, 0"); a("s_mov_b32 s100, 0"); a("s_mov_b32 s101, 0")
    a(f"s_cmp_eq_u32 s{sWAVE}, 3")
    a("s_cbranch_scc1 L_loader")
    lane_setup_compute(a)
    a(f"s_mov_b32 s{sTHR}, {f2u(THR):#x}")
    a(f"s_mov_b32 s{sSCALE}, {f2u(SCALE):#x}")
    a(f"s_mov_b32 s{sUNIT}, 0")
    a(f"s_lshl_b32 s{sH}, s{sG}, 3")
    a(f"s_add_u32 s{sH}, s{sH}, s{sNQ}")
    q_phase(a)
    stamp(a, 2)
    call(a, "L_uprol")
    a(f"s_mov_b32 s{sSLOT}, 1")
    a(f"s_mov_b32 s{sDELTA}, {32*KB}")
    a(f"s_mov_b32 s{sN}, 8")
    call(a, "L_attn")
    stamp(a, 3)
    a(f"s_mov_b32 s{sPEND}, s{sDELTA}")
    for i in range(32): a(f"v_accvgpr_mov_b32 a{aQF+i}, a{aQF2+i}")
    a(f"v_mov_b32 v4, {NONCE_LDS}")
    a("ds_read_b32 v5, v4")
    call(a, "L_uepi")
    a("s_waitcnt lgkmcnt(0)")
    a(f"v_readfirstlane_b32 s{sNONCE}, v5")
    for i in range(80): a(f"v_accvgpr_write_b32 a{aACC2+i}, 0")
    a("s_barrier")
    a(f"s_mov_b32 s{sOFFA}, {96*KB}")
    a(f"s_mov_b32 s{sOFFB}, {116*KB}")
    call(a, "L_own")
    a(f"s_mov_b32 s{sUNIT}, 1")
    a(f"s_add_u32 s{sH}, s{sH}, 4")
    for i in range(64): a(f"v_mov_b32 v{OACC+i}, 0")
    stamp(a, 4)
    call(a, "L_uprol")
    a("s_waitcnt vmcnt(0)")
    flag_store_wave(a, sF1, 0, sNQ)
    a(f"s_mov_b32 s{sDELTA}, s{sPEND}")
    a(f"s_mov_b32 s{sP}, 0")
    a.label("L_r2")
    a(f"s_mov_b32 s{sN}, 1")
    call(a, "L_attn")
    a(f"s_mov_b32 s{sPEND}, s{sDELTA}")
    a(f"s_cmp_lt_u32 s{sP}, 2")
    a("s_cbranch_scc1 L_r2_next")
    a(f"s_and_b32 s{sOFFA}, s{sP}, 1")
    a(f"s_lshl_b32 s{sOFFA}, s{sOFFA}, 15")
    a(f"s_add_u32 s{sOFFA}, s{sOFFA}, {96*KB}")
    call(a, "L_oatile")
    a.label("L_r2_next")
    a(f"s_mov_b32 s{sDELTA}, s{sPEND}")
    a(f"s_add_u32 s{sP}, s{sP}, 1")
    a(f"s_cmp_lt_u32 s{sP}, 8")
    a("s_cbranch_scc1 L_r2")
    a.label("L_r2_done")
    stamp(a, 5)
    a("s_barrier")
    call(a, "L_uepi")
    a(f"s_mov_b32 s{sOFFA}, {WB_POS[0]}")
    a(f"s_mov_b32 s{sOFFB}, {WB_POS[1]}")
    call(a, "L_own")
    tail(a, P)
    final_exchange(a, P)
    a("s_waitcnt vmcnt(0)")
    stamp(a, 10); stamp_rt(a, 9)
    dump_stamps(a)
    if STAMPS and P.get('dbgout', 0):
        a(f"s_cmp_eq_u32 s2, {P.get('dbgwg', 8)}")
        a("s_cbranch_scc0 L_dbg_skip")
        a(f"s_cmp_eq_u32 s{sWAVE}, 0")
        a("s_cbranch_scc0 L_dbg_skip")
        a("v_mov_b32 v2, 0")
        for i, k in enumerate((2, 3, 4, 5, 6, 7, 8, 10)):
            a(f"s_sub_u32 s96, s{sTM+k}, s{sTM+1}")
            a("v_mov_b32 v3, s96")
            a(f"global_store_dword v2, v3, s[{sDBG}:{sDBG+1}] offset:{4*(i+1)}")
            a("s_nop 1")
        a(f"s_sub_u32 s96, s{sTM+9}, s{sTM+0}")
        a("v_mov_b32 v3, s96")
        a(f"global_store_dword v2, v3, s[{sDBG}:{sDBG+1}] offset:{4*9}")
        a.label("L_dbg_skip")
    a("s_endpgm")
    unit_prologue(a); attn_loop(a); unit_epilogue(a); oa_tile(a); own_tiles(a)
    slow_path(a, 0); slow_path(a, 1)
    a.label("L_loader")
    loader_setup(a)
    loader_main(a, P)
    dump_trace(a, 60, 3)
    stamp(a, 10); stamp_rt(a, 9)
    dump_stamps(a)
    a("s_endpgm")
    loader_routines(a, P)
    a.label("L_END")
    a("s_endpgm")
    errs = check_hazards(a.lines)
    hdr = HDR + "; @launch grid=(256,1,1) block=(256,1,1) lds=163840\n"
    desc = f""".section .rodata,"a"
.p2align 6
.amdhsa_kernel {kn}
  .amdhsa_next_free_vgpr 512
  .amdhsa_next_free_sgpr 102
  .amdhsa_accum_offset 256
  .amdhsa_group_segment_fixed_size 0
  .amdhsa_kernarg_size 104
  .amdhsa_user_sgpr_count 2
  .amdhsa_user_sgpr_kernarg_segment_ptr 1
  .amdhsa_system_sgpr_workgroup_id_x 1
.end_amdhsa_kernel
"""
    return hdr + a.text() + desc, errs

if __name__ == "__main__":
    out = sys.argv[1] if len(sys.argv) > 1 else "v3.s"
    P = {}
    for arg in sys.argv[2:]:
        if arg == 'stamps': STAMPS = True
        elif arg == 'trace': TRACE = True
        elif '=' in arg:
            k, v = arg.split('=', 1); P[k] = eval(v)
    txt, errs = gen(P)
    open(out, "w").write(txt)
    print("written", out, len(txt), "bytes; hazards:", len(errs))
```
